```python
import torch

def _softmax(x, axis=-1):
    return torch.softmax(x, dim=axis)
def _gelu(x):
    return torch.nn.functional.gelu(x, approximate="tanh")
def _silu(x):
    return torch.nn.functional.silu(x)
def _sigmoid(x):
    return torch.sigmoid(x)
def _layernorm(x, axis=-1, eps=1e-5):
    m = x.mean(dim=axis, keepdim=True)
    v = x.var(dim=axis, keepdim=True, unbiased=False)
    return (x - m) / torch.sqrt(v + eps)
def _scatter_add(tgt, idx, src, axis=0):
    return tgt.clone().index_add_(axis, idx, src)
def _segment_sum(src, seg, n):
    out = torch.zeros((n,) + src.shape[1:], dtype=src.dtype)
    return out.index_add_(0, seg, src)
def _pad(x, pw):
    flat = tuple(v for pair in reversed(pw) for v in pair)
    return torch.nn.functional.pad(x, flat)

kernel_name = 'parallel_sum__ssm_conv_h3__dense_activation_relu__prompt'

def setup_inputs():

    _w = (lambda a: (lambda t: t.to(torch.bfloat16) if t.is_floating_point() else t)(torch.as_tensor(a)))
    def _A_setup():
        B, S, D = 1, 2048, 448
        ks = 4
        return {
            "q": _w((lambda *s: torch.randn(*s, dtype=torch.bfloat16) * 0.05)(B, S, D)),
            "k": _w((lambda *s: torch.randn(*s, dtype=torch.bfloat16) * 0.8)(B, S, D)),
            "v": _w((lambda *s: torch.randn(*s, dtype=torch.bfloat16) * 0.8)(B, S, D)),
            "shift_k": _w((lambda *s: torch.randn(*s, dtype=torch.bfloat16) * 0.8)(D, ks) * 0.5),
            "ssm_k": _w((lambda *s: torch.randn(*s, dtype=torch.bfloat16) * 0.8)(D, S) * (1.0 / S ** 0.5)),
            "ssm_D": _w((lambda *s: torch.randn(*s, dtype=torch.bfloat16) * 0.8)(D)),
        }
    _A_in = _A_setup()

    def _B_setup():
        B, S, D, Dff = 1, 2048, 448, 1792
        return {
            "x": _w((lambda *s: torch.randn(*s, dtype=torch.bfloat16) * 0.05)(B, S, D)),
            "w1": _w((lambda *s: torch.randn(*s, dtype=torch.bfloat16) * 0.05)(D, Dff)),
            "w2": _w((lambda *s: torch.randn(*s, dtype=torch.bfloat16) * 0.05)(Dff, D)),
        }
    _B_in = _B_setup()

    return {
        "A_q": _A_in["q"],
        "A_k": _A_in["k"],
        "A_v": _A_in["v"],
        "A_shift_k": _A_in["shift_k"],
        "A_ssm_k": _A_in["ssm_k"],
        "A_ssm_D": _A_in["ssm_D"],
        "B_x": _B_in["x"],
        "B_w1": _B_in["w1"],
        "B_w2": _B_in["w2"],
    }

def reference(A_q, A_k, A_v, A_shift_k, A_ssm_k, A_ssm_D, B_x, B_w1, B_w2):
    def _A_ref(q, k, v, shift_k, ssm_k, ssm_D):
        B, S, D = q.shape
        ks = shift_k.shape[-1]
        k_pad = _pad(k, ((0, 0), (ks - 1, 0), (0, 0)))
        k_shift = torch.zeros_like(k)
        for t in range(ks):
            k_shift = k_shift + k_pad[:, t:t + S, :] * shift_k[:, ks - 1 - t][None, None, :]
        kv = k_shift * v
        L = 2 * S
        kv_pad = _pad(kv, ((0, 0), (0, S), (0, 0)))
        kf_pad = _pad(ssm_k, ((0, 0), (0, S)))
        kv_f = (lambda x, axes=(-2,-1): torch.fft.rfft2(x.float(), dim=axes))(kv_pad[:, None, :, :], axes=(1, 2))
        kf_f = (lambda x, axes=(-2,-1): torch.fft.rfft2(x.float(), dim=axes))(kf_pad[:, None, :], axes=(1, 2))
        kf_f = (lambda x, *d: x.permute(*d))(kf_f, 1, 2, 0)
        y_f = kv_f * kf_f[None, :, :, :]
        y = (lambda x, s, axes=(-2,-1): torch.fft.irfft2(x, s=s, dim=axes).to(torch.bfloat16))(y_f, (1, L), axes=(1, 2))[:, 0, :S, :]
        y = y + kv * ssm_D[None, None, :]
        return q * y

    def _B_ref(x, w1, w2):
        h = torch.einsum("bsd,df->bsf", x, w1)
        zero = torch.zeros_like(h)
        h = torch.maximum(h, zero)
        return torch.einsum("bsf,fd->bsd", h, w2)

    x = A_q
    xn = _layernorm(x, axis=-1)
    return x + _A_ref(xn, A_k, A_v, A_shift_k, A_ssm_k, A_ssm_D) + _B_ref(xn, B_w1, B_w2)
```

```python
class Asm:
    def __init__(self):
        self.lines = []
        self.vm = []
        self.lg = []
        self.nlabel = 0
    def __call__(self, s):
        self.lines.append("    " + s)
    def raw(self, s): self.lines.append(s)
    def c(self, s): self.lines.append("    ; " + s)
    def label(self, name): self.lines.append(name + ":")
    def newlabel(self, p="L"):
        self.nlabel += 1; return f"{p}_{self.nlabel}"
    def vmem(self, s, tag):
        self(s); self.vm.append(tag)
    def vm_count_after(self, tag):
        idx = [i for i, t in enumerate(self.vm) if t == tag]
        assert idx, f"no vmem op tagged {tag}"
        return len(self.vm) - 1 - idx[-1]
    def wait_vm(self, tag, extra=""):
        n = self.vm_count_after(tag)
        n = min(n, 63)
        self(f"s_waitcnt vmcnt({n}){extra}")
    def ds(self, s, tag=None):
        self(s); self.lg.append(tag)
    def wait_lg(self, tag=None):
        if tag is None:
            self("s_waitcnt lgkmcnt(0)"); return
        idx = [i for i, t in enumerate(self.lg) if t == tag]
        assert idx, f"no lds op tagged {tag}"
        n = len(self.lg) - 1 - idx[-1]
        self(f"s_waitcnt lgkmcnt({min(n,15)})")
    def text(self): return "\n".join(self.lines) + "\n"

def v(a, n=1): return f"v{a}" if n == 1 else f"v[{a}:{a+n-1}]"
def a_(a, n=1): return f"a{a}" if n == 1 else f"a[{a}:{a+n-1}]"
def s(a, n=1): return f"s{a}" if n == 1 else f"s[{a}:{a+n-1}]"

class Alloc:
    def __init__(self, lo, hi):
        self.lo, self.hi = lo, hi; self.used = {}
        self.free_ = set(range(lo, hi)); self.max = lo
    def get(self, name, n=1, align=None, at=None):
        if align is None: align = 1 if n == 1 else (2 if n == 2 else 4)
        b = self.lo + (-self.lo % align)
        if at is not None: b = at
        while b + n <= self.hi:
            if all((b+i) in self.free_ for i in range(n)):
                for i in range(n): self.free_.discard(b+i)
                assert name not in self.used, name
                self.used[name] = (b, n); self.max = max(self.max, b+n); return b
            b += align
        raise RuntimeError(f"out of regs for {name} ({n}); used={self.used}")
    def free(self, *names):
        for name in names:
            b, n = self.used.pop(name)
            for i in range(n): self.free_.add(b+i)
```

```python
import sys
from asmlib import *
KNAME = "parallel_sum__ssm_conv_h3__dense_activation_relu__prompt_kernel"
S, D, F = 2048, 448, 1792
NWG = 224
TAGC = 0x9E3779B9
WS_KVT, WS_YT, WS_H, WS_DBG, WS_SIZE = 1<<20, 3<<20, 5<<20, 14<<20, 16<<20
KIMG, VIMG, KVO = 98304, 107520, 115712
CONV0, CONVSZ = 131072, 12928
E_OFF, O_OFF, X_OFF = 64, 4224, 8320
ST1, ST2, CSUM = 157184, 158208, 159232
LDS_TOTAL = 163840
SPIN = 200000

def gen(stamps=False, stop_after=None):
    A = Asm()
    V = Alloc(1, 256)
    SRD_X, SRD_K, SRD_V, SRD_SSM, SRD_W1, SRD_W2, SRD_OUT, SRD_WS = 28, 32, 36, 40, 44, 48, 52, 56
    sW, sFB, sRB, sFH, sR1, sF1, sR2, sC2, sQ, sB64, sTAGC, sTAGH, sCG, sHG, sROT = range(60, 75)
    sT0, sT1, sT2, sT3, sXB, sWB, sLB, sH0, sDD, sWR, sWF, sOWN, sROT2, sP = range(75, 89)
    sST = 90
    nst = [0]
    def stamp():
        if not stamps: return
        A("s_memtime s[16:17]"); A("s_waitcnt lgkmcnt(0)"); A(f"s_mov_b32 s{sST+nst[0]}, s16"); nst[0] += 1
        assert sST + nst[0] <= 102
    def srd(b, p, n):
        A(f"s_mov_b32 s{b}, s{p}"); A(f"s_and_b32 s{b+1}, s{p+1}, 0xffff"); A(f"s_mov_b32 s{b+2}, {n}"); A(f"s_mov_b32 s{b+3}, 0x20000")
    def dma(voff, srdb, soff, m0expr, tag, sc=""):
        sr, imm = m0expr
        if sr is None: A(f"s_mov_b32 m0, {imm}")
        else: A(f"s_add_u32 m0, s{sr}, {imm}")
        A("s_nop 0")
        A.vmem(f"buffer_load_dwordx4 v{voff}, s[{srdb}:{srdb+3}], {soff} offen {sc} lds".replace("  ", " "), tag)
    def poll(vaddr, soff, nl, tagreg, vtmp):
        lp, lx = A.newlabel("POLL"), A.newlabel("POLLX")
        if nl < 64:
            A(f"s_mov_b64 exec, {(1<<nl)-1}" if nl <= 6 else f"s_bfm_b64 exec, {nl}, 0")
        A(f"s_mov_b32 s{sT3}, 0")
        A.label(lp)
        A(f"buffer_load_dword v{vtmp}, v{vaddr}, s[{SRD_WS}:{SRD_WS+3}], {soff} offen sc1")
        A("s_waitcnt vmcnt(0)")
        A(f"v_cmp_ne_u32 vcc, s{tagreg}, v{vtmp}")
        A(f"s_add_u32 s{sT3}, s{sT3}, 1")
        A(f"s_cmp_gt_u32 s{sT3}, {SPIN}")
        A(f"s_cbranch_scc1 {lx}")
        A(f"s_cbranch_vccnz {lp}")
        A.label(lx)
        if nl < 64: A("s_mov_b64 exec, -1")
        A.vm.append("poll")
    def flag_store(soff, tagreg, vz, vtmp):
        A(f"v_mov_b32 v{vtmp}, s{tagreg}")
        A("s_mov_b64 exec, 1")
        A.vmem(f"buffer_store_dword v{vtmp}, v{vz}, s[{SRD_WS}:{SRD_WS+3}], {soff} offen sc1", "flag")
        A("s_mov_b64 exec, -1")

    A.raw(f"; @launch grid=({NWG},1,1) block=(256,1,1) lds={LDS_TOTAL}")
    A.raw('.amdgcn_target "amdgcn-amd-amdhsa--gfx950"')
    A.raw(".text"); A.raw(f".globl {KNAME}"); A.raw(".p2align 8"); A.raw(f".type {KNAME},@function"); A.raw(f"{KNAME}:")
    A(f"s_cmp_ge_u32 s2, {NWG}"); A("s_cbranch_scc1 L_end")
    A("s_load_dwordx16 s[4:19], s[0:1], 0")
    A("s_load_dwordx8 s[20:27], s[0:1], 64")
    A("s_getpc_b64 s[88:89]")
    vt = V.get("t0"); vt1 = V.get("t1"); vt2 = V.get("t2"); vt3 = V.get("t3")
    vpf = V.get("pf")
    A(f"v_lshlrev_b32 v{vt}, 7, v0")
    A.vmem(f"global_load_dword v{vpf}, v{vt}, s[88:89]", "pf")
    vl, vidx, vg, vz, vl16 = V.get("lane"), V.get("idx"), V.get("g"), V.get("zero"), V.get("l16")
    A(f"v_lshrrev_b32 v{vt1}, 6, v0"); A(f"v_and_b32 v{vl}, 63, v0")
    A(f"v_readfirstlane_b32 s{sW}, v{vt1}")
    A(f"v_and_b32 v{vidx}, 15, v{vl}"); A(f"v_lshrrev_b32 v{vg}, 4, v{vl}"); A(f"v_mov_b32 v{vz}, 0"); A(f"v_lshlrev_b32 v{vl16}, 4, v{vl}")
    A(f"s_and_b32 s{sT0}, s2, 7"); A(f"s_lshr_b32 s{sT1}, s2, 3")
    A(f"s_mul_i32 s{sRB}, s{sT1}, 37"); A(f"s_lshr_b32 s{sRB}, s{sRB}, 8")
    A(f"s_mul_i32 s{sT2}, s{sRB}, 7"); A(f"s_sub_u32 s{sFB}, s{sT1}, s{sT2}")
    A(f"s_and_b32 s{sFH}, s{sT0}, 1"); A(f"s_lshr_b32 s{sT1}, s{sT0}, 1")
    A(f"s_lshl_b32 s{sR1}, s{sT1}, 2"); A(f"s_add_u32 s{sR1}, s{sR1}, s{sRB}")
    A(f"s_lshl_b32 s{sHG}, s{sR1}, 9"); A(f"s_add_u32 s{sHG}, s{sHG}, 16384")
    A(f"s_lshl_b32 s{sB64}, s{sR1}, 1"); A(f"s_add_u32 s{sB64}, s{sB64}, s{sFH}")
    A(f"s_lshl_b32 s{sR1}, s{sR1}, 7"); A(f"s_lshl_b32 s{sR2}, s{sB64}, 6")
    A(f"s_mul_i32 s{sF1}, s{sFH}, 7"); A(f"s_add_u32 s{sF1}, s{sF1}, s{sFB}"); A(f"s_lshl_b32 s{sF1}, s{sF1}, 7")
    A(f"s_lshl_b32 s{sC2}, s{sFB}, 6")
    A(f"s_lshl_b32 s{sQ}, s{sT0}, 2"); A(f"s_add_u32 s{sQ}, s{sQ}, s{sRB}")
    A(f"s_lshl_b32 s{sCG}, s{sFB}, 11")
    A(f"s_lshl_b32 s{sROT}, s{sRB}, 1"); A(f"s_add_u32 s{sROT}, s{sROT}, s{sFB}"); A(f"s_add_u32 s{sROT}, s{sROT}, s{sT1}")
    for _ in range(2):
        A(f"s_cmp_ge_u32 s{sROT}, 7"); A(f"s_cselect_b32 s{sT2}, 7, 0"); A(f"s_sub_u32 s{sROT}, s{sROT}, s{sT2}")
    A(f"s_and_b32 s{sWR}, s{sW}, 1"); A(f"s_lshr_b32 s{sWF}, s{sW}, 1")
    A(f"s_lshl_b32 s{sLB}, s{sW}, 15")
    A("s_waitcnt lgkmcnt(0)")
    stamp()
    srd(SRD_X, 4, S*D*2); srd(SRD_K, 6, S*D*2); srd(SRD_V, 8, S*D*2); srd(SRD_W1, 18, D*F*2)
    srd(SRD_SSM, 12, D*S*2); srd(SRD_W2, 20, D*F*2); srd(SRD_OUT, 22, S*D*2); srd(SRD_WS, 26, WS_SIZE)
    A(f"s_load_dword s{sTAGC}, s[26:27], s{sCG}")
    A(f"s_load_dword s{sTAGH}, s[26:27], s{sHG}")
    A(f"s_lshl_b32 s{sT0}, s{sQ}, 1"); A(f"s_add_u32 s{sT0}, s{sT0}, s{sC2}")
    A(f"s_lshl_b32 s{sT1}, s{sT0}, 1")
    A(f"s_load_dword s{sDD}, s[14:15], s{sT1}")
    A(f"s_add_u32 s{sT0}, s{sT0}, s{sWF}"); A(f"s_lshl_b32 s{sT0}, s{sT0}, 12")
    A(f"s_load_dword s{sH0}, s[12:13], s{sT0}")
    vrow8 = V.get("row8")
    A(f"v_lshrrev_b32 v{vt}, 3, v{vl}"); A(f"v_mul_u32_u24 v{vt}, 896, v{vt}")
    A(f"v_and_b32 v{vt1}, 7, v{vl}"); A(f"v_lshlrev_b32 v{vt1}, 4, v{vt1}"); A(f"v_add_u32 v{vrow8}, v{vt}, v{vt1}")
    A(f"s_mul_i32 s{sT0}, s{sR2}, 896"); A(f"s_lshl_b32 s{sT1}, s{sC2}, 1"); A(f"s_add_u32 s{sT0}, s{sT0}, s{sT1}")
    lh = A.newlabel("HALO")
    A(f"s_cmp_lg_u32 s{sW}, 0"); A(f"s_cbranch_scc1 {lh}")
    A(f"s_sub_u32 s{sT1}, s{sT0}, {8*896}"); A(f"v_add_u32 v{vt2}, s{sT1}, v{vrow8}")
    A(f"s_mov_b32 m0, {KIMG}"); A("s_nop 0")
    A(f"buffer_load_dwordx4 v{vt2}, s[{SRD_K}:{SRD_K+3}], 0 offen lds")
    A.label(lh)
    A(f"s_mul_i32 s{sT1}, s{sW}, {16*896}"); A(f"s_add_u32 s{sT0}, s{sT0}, s{sT1}"); A(f"s_add_u32 s{sT1}, s{sT0}, {8*896}")
    A(f"s_lshl_b32 s{sT2}, s{sW}, 11")
    dma(vrow8, SRD_K, f"s{sT0}", (sT2, KIMG+1024), "kv"); dma(vrow8, SRD_K, f"s{sT1}", (sT2, KIMG+2048), "kv")
    dma(vrow8, SRD_V, f"s{sT0}", (sT2, VIMG), "kv"); dma(vrow8, SRD_V, f"s{sT1}", (sT2, VIMG+1024), "kv")
    vtap = V.get("tap", 2)
    A(f"s_lshl_b32 s{sT0}, s{sW}, 4"); A(f"s_add_u32 s{sT0}, s{sT0}, s{sC2}")
    A(f"v_add_lshl_u32 v{vt}, v{vidx}, s{sT0}, 3")
    A.vmem(f"global_load_dwordx2 v[{vtap}:{vtap+1}], v{vt}, s[10:11]", "kv")
    vxe, vxo, vw1 = V.get("xe"), V.get("xo"), V.get("w1off")
    A(f"v_lshrrev_b32 v{vt}, 3, v{vl}"); A(f"v_mul_u32_u24 v{vt}, 896, v{vt}")
    A(f"v_and_b32 v{vt1}, 7, v{vl}"); A(f"v_xor_b32 v{vt1}, v{vt1}, v{vg}")
    A(f"v_lshl_add_u32 v{vxe}, v{vt1}, 4, v{vt}"); A(f"v_xor_b32 v{vt1}, 4, v{vt1}"); A(f"v_lshl_add_u32 v{vxo}, v{vt1}, 4, v{vt}")
    A(f"v_mul_u32_u24 v{vt}, 3584, v{vg}"); A(f"v_lshlrev_b32 v{vt1}, 2, v{vg}"); A(f"v_xor_b32 v{vt1}, v{vt1}, v{vidx}")
    A(f"v_lshl_add_u32 v{vw1}, v{vt1}, 4, v{vt}")
    A(f"s_lshl_b32 s{sT0}, s{sW}, 5"); A(f"s_add_u32 s{sT0}, s{sT0}, s{sR1}"); A(f"s_mul_i32 s{sXB}, s{sT0}, 896")
    A(f"s_mul_i32 s{sWB}, s{sW}, {16*3584}"); A(f"s_lshl_b32 s{sT0}, s{sF1}, 1"); A(f"s_add_u32 s{sWB}, s{sWB}, s{sT0}")
    sM = sP
    def chunk_dma(tau):
        slot = (tau % 4) * 32768
        A(f"s_lshl_b32 s{sT0}, s{sROT}, 7"); A(f"s_add_u32 s{sT0}, s{sT0}, s{sXB}")
        A(f"s_mul_i32 s{sT1}, s{sROT}, {64*3584}"); A(f"s_add_u32 s{sT1}, s{sT1}, s{sWB}")
        for b in range(4):
            dma(vxe if b % 2 == 0 else vxo, SRD_X, f"s{sT0}", (sM, slot + b*1024), f"c{tau}")
            if b < 3: A(f"s_add_u32 s{sT0}, s{sT0}, {8*896}")
            dma(vw1, SRD_W1, f"s{sT1}", (sM, slot + 16384 + b*1024), f"c{tau}")
            if b < 3: A(f"s_add_u32 s{sT1}, s{sT1}, {4*3584}")
        A(f"s_add_u32 s{sROT}, s{sROT}, 1"); A(f"s_cmp_eq_u32 s{sROT}, 7"); A(f"s_cselect_b32 s{sROT}, 0, s{sROT}")
    A(f"s_lshl_b32 s{sM}, s{sW}, 12")
    for tau in range(3): chunk_dma(tau)
    vcb = V.get("convbase")
    A(f"s_mul_i32 s{sT0}, s{sWF}, {CONVSZ}"); A(f"s_add_u32 s{sT0}, s{sT0}, {CONV0}")
    A(f"v_lshl_add_u32 v{vcb}, v{vl}, 2, s{sT0}")
    A.ds(f"ds_write_b32 v{vcb}, v{vz} offset:{X_OFF+4096}"); A.ds(f"ds_write_b32 v{vcb}, v{vz} offset:{X_OFF+4096+256}")
    A("s_mov_b64 exec, 0xffff")
    A.ds(f"ds_write_b32 v{vcb}, v{vz} offset:0")
    A("s_waitcnt lgkmcnt(0)")
    A(f"s_lshl_b32 s{sT1}, s{sH0}, 16"); A(f"v_mov_b32 v{vt}, s{sT1}"); A(f"v_cmp_eq_u32 vcc, 15, v{vl}"); A("s_nop 1")
    A(f"v_cndmask_b32 v{vt}, 0, v{vt}, vcc")
    A.ds(f"ds_write_b32 v{vcb}, v{vt} offset:{O_OFF-64}")
    A("s_mov_b64 exec, -1")
    A(f"s_add_u32 s{sTAGC}, s{sTAGC}, {TAGC}"); A(f"s_add_u32 s{sTAGH}, s{sTAGH}, {TAGC}")
    V.free("convbase")
    A.wait_vm("kv", " lgkmcnt(0)")
    A("s_barrier")
    stamp()
    kd = V.get("kd", 10, 2); vd = V.get("vd", 8, 2); ks = V.get("ks", 9); ov = V.get("ov", 16, 4); pk = V.get("pk", 8, 4)
    A(f"v_lshrrev_b32 v{vt}, 2, v{vidx}"); A(f"v_lshl_add_u32 v{vt}, v{vg}, 4, v{vt}"); A(f"v_lshlrev_b32 v{vt}, 7, v{vt}")
    A(f"v_and_b32 v{vt1}, 3, v{vidx}"); A(f"v_lshl_add_u32 v{vt}, v{vt1}, 3, v{vt}")
    A(f"s_lshl_b32 s{sT0}, s{sW}, 5"); A(f"s_add_u32 s{sT0}, s{sT0}, {KIMG}"); A(f"v_add_u32 v{vt}, s{sT0}, v{vt}")
    for u in range(5): A.ds(f"ds_read_b64_tr_b16 v[{kd+2*u}:{kd+2*u+1}], v{vt} offset:{512+512*u}")
    for u in range(4): A.ds(f"ds_read_b64_tr_b16 v[{vd+2*u}:{vd+2*u+1}], v{vt} offset:{VIMG-KIMG+512*u}")
    A(f"v_alignbit_b32 v{vtap}, v{vtap}, v{vtap}, 16"); A(f"v_alignbit_b32 v{vtap+1}, v{vtap+1}, v{vtap+1}, 16")
    A("s_waitcnt lgkmcnt(4)")
    for e in range(9): A(f"v_alignbit_b32 v{ks+e}, v{kd+e+1}, v{kd+e}, 16")
    for e in range(8):
        A(f"v_dot2_f32_bf16 v{ov+2*e+1}, v{kd+e+2}, v{vtap}, 0"); A(f"v_dot2_f32_bf16 v{ov+2*e}, v{ks+e+1}, v{vtap}, 0")
    for e in range(8):
        A(f"v_dot2_f32_bf16 v{ov+2*e+1}, v{kd+e+1}, v{vtap+1}, v{ov+2*e+1}"); A(f"v_dot2_f32_bf16 v{ov+2*e}, v{ks+e}, v{vtap+1}, v{ov+2*e}")
    A("s_waitcnt lgkmcnt(0)")
    for e in range(8):
        A(f"v_lshlrev_b32 v{ks+e}, 16, v{vd+e}"); A(f"v_and_b32 v{vd+e}, 0xffff0000, v{vd+e}")
    for e in range(8):
        A(f"v_mul_f32 v{ov+2*e}, v{ov+2*e}, v{ks+e}"); A(f"v_mul_f32 v{ov+2*e+1}, v{ov+2*e+1}, v{vd+e}")
    for u in range(8): A(f"v_cvt_pk_bf16_f32 v{pk+u}, v{ov+15-2*u}, v{ov+14-2*u}")
    A(f"s_lshl_b32 s{sT0}, s{sW}, 11"); A(f"s_add_u32 s{sT0}, s{sT0}, {KVO}")
    A(f"v_xor_b32 v{vt}, 3, v{vg}"); A(f"v_lshlrev_b32 v{vt}, 5, v{vt}"); A(f"v_lshl_add_u32 v{vt}, v{vidx}, 7, v{vt}"); A(f"v_add_u32 v{vt}, s{sT0}, v{vt}")
    A.ds(f"ds_write_b128 v{vt}, v[{pk}:{pk+3}]"); A.ds(f"ds_write_b128 v{vt}, v[{pk+4}:{pk+7}] offset:16")
    A(f"v_add_u32 v{vt1}, s{sT0}, v{vl16}")
    A("s_waitcnt lgkmcnt(0)")
    A.ds(f"ds_read_b128 v[{ov}:{ov+3}], v{vt1}"); A.ds(f"ds_read_b128 v[{ov+4}:{ov+7}], v{vt1} offset:1024")
    A(f"v_lshrrev_b32 v{vt}, 3, v{vl}"); A(f"v_lshlrev_b32 v{vt}, 12, v{vt}"); A(f"v_and_b32 v{vt1}, 7, v{vl}"); A(f"v_lshl_add_u32 v{vt}, v{vt1}, 4, v{vt}")
    A(f"s_lshl_b32 s{sT0}, s{sW}, 4"); A(f"s_add_u32 s{sT0}, s{sT0}, s{sC2}"); A(f"s_lshl_b32 s{sT0}, s{sT0}, 12")
    A(f"s_lshl_b32 s{sT1}, s{sR2}, 1"); A(f"s_sub_u32 s{sT0}, s{sT0}, s{sT1}"); A(f"s_add_u32 s{sT0}, s{sT0}, {WS_KVT+3968}")
    A(f"s_add_u32 s{sT1}, s{sT0}, {8*4096}")
    A("s_waitcnt lgkmcnt(0)")
    A.vmem(f"buffer_store_dwordx4 v[{ov}:{ov+3}], v{vt}, s[{SRD_WS}:{SRD_WS+3}], s{sT0} offen sc1", "kvst")
    A.vmem(f"buffer_store_dwordx4 v[{ov+4}:{ov+7}], v{vt}, s[{SRD_WS}:{SRD_WS+3}], s{sT1} offen sc1", "kvst")
    V.free("kd", "vd", "ks", "pk", "tap")
    stamp()
    acc = V.get("acc", 64, 4)
    fr = [V.get("fr0", 16, 4), V.get("fr1", 16, 4)]
    aB = V.get("aB", 16); aA = V.get("aA", 4)
    cs, rs, sq = V.get("cs"), V.get("rs"), V.get("sq")
    vr32, vhi = V.get("r32"), V.get("hi")
    A(f"v_and_b32 v{vr32}, 31, v{vl}"); A(f"v_lshrrev_b32 v{vhi}, 5, v{vl}")
    A(f"v_bfe_u32 v{vt}, v{vl}, 1, 3"); A(f"v_xor_b32 v{vt}, v{vt}, v{vhi}"); A(f"v_lshlrev_b32 v{vt}, 4, v{vt}")
    A(f"v_lshl_add_u32 v{vt}, v{vr32}, 7, v{vt}")
    A(f"s_lshl_b32 s{sT0}, s{sWR}, 13"); A(f"s_lshl_b32 s{sT1}, s{sWF}, 12"); A(f"s_add_u32 s{sT0}, s{sT0}, s{sT1}")
    A(f"v_add_u32 v{vt}, s{sT0}, v{vt}")
    for st in range(4):
        A(f"v_xor_b32 v{aB+st}, {st<<5}, v{vt}" if st else f"v_mov_b32 v{aB}, v{vt}")
        A(f"v_xor_b32 v{aB+4+st}, 0x1000, v{aB+st}")
    for i in range(8): A(f"v_add_u32 v{aB+8+i}, 0x10000, v{aB+i}")
    A(f"v_lshrrev_b32 v{vt}, 2, v{vidx}")
    A(f"s_lshl_b32 s{sT0}, s{sWF}, 1"); A(f"s_add_u32 s{sT0}, s{sT0}, s{sWR}")
    A(f"v_xor_b32 v{vt1}, s{sT0}, v{vt}"); A(f"v_lshlrev_b32 v{vt1}, 6, v{vt1}")
    A(f"v_lshl_add_u32 v{vt}, v{vhi}, 3, v{vt}"); A(f"v_lshl_add_u32 v{vt1}, v{vt}, 8, v{vt1}")
    A(f"v_and_b32 v{vt}, 1, v{vg}"); A(f"v_lshl_add_u32 v{vt1}, v{vt}, 5, v{vt1}")
    A(f"v_and_b32 v{vt}, 3, v{vidx}"); A(f"v_lshl_add_u32 v{vt1}, v{vt}, 3, v{vt1}")
    A(f"v_add_u32 v{aA}, 16384, v{vt1}"); A(f"v_xor_b32 v{aA+1}, 64, v{aA}")
    A(f"v_add_u32 v{aA+2}, 0x10000, v{aA}"); A(f"v_add_u32 v{aA+3}, 0x10000, v{aA+1}")
    A(f"v_mov_b32 v{cs}, 0"); A(f"v_mov_b32 v{rs}, 0"); A(f"v_mov_b32 v{sq}, 0")
    sONE = sROT2
    A(f"s_mov_b32 s{sONE}, 0x3f803f80")
    def reads(tau, st):
        f = fr[st % 2]; slot = tau % 4; hs = slot // 2; so = (slot % 2) * 32768
        for t in range(2):
            A.ds(f"ds_read_b128 v[{f+8+4*t}:{f+11+4*t}], v{aB+8*hs+4*t+st} offset:{so}", f"r{tau}_{st}")
            for u in range(2):
                A.ds(f"ds_read_b64_tr_b16 v[{f+4*t+2*u}:{f+4*t+2*u+1}], v{aA+2*hs+t} offset:{so+4096*st+1024*u}", f"r{tau}_{st}")
    def mfmas(tau, st):
        f = fr[st % 2]; first = (tau == 0 and st == 0)
        k = 0
        for ta in range(2):
            for tb in range(2):
                d = acc + 16*(2*ta+tb)
                A(f"v_mfma_f32_32x32x16_bf16 v[{d}:{d+15}], v[{f+4*ta}:{f+4*ta+3}], v[{f+8+4*tb}:{f+11+4*tb}], " + ("0" if first else f"v[{d}:{d+15}]"))
                A(f"v_dot2c_f32_bf16 v{cs}, s{sONE}, v{f+k}"); A(f"v_dot2c_f32_bf16 v{rs}, s{sONE}, v{f+8+k}"); A(f"v_dot2c_f32_bf16 v{sq}, v{f+8+k}, v{f+8+k}")
                k += 1
    vssm = None
    for tau in range(7):
        A.c(f"chunk {tau}")
        if tau == 2:
            A.wait_vm("kvst", " lgkmcnt(0)")
        else:
            A.wait_vm(f"c{tau}", " lgkmcnt(0)")
        A("s_barrier")
        reads(tau, 0)
        if tau == 2:
            A(f"s_lshl_b32 s{sT0}, s{sW}, 7"); A(f"s_lshl_b32 s{sT1}, s{sB64}, 2"); A(f"s_add_u32 s{sT0}, s{sT0}, s{sT1}")
            A(f"s_add_u32 s{sT0}, s{sT0}, s{sCG}"); A(f"s_add_u32 s{sT0}, s{sT0}, 128")
            flag_store(f"s{sT0}", sTAGC, vz, vt)
        if tau > 0: mfmas(tau-1, 3)
        if tau + 3 < 7: chunk_dma(tau+3)
        if tau == 4:
            A(f"s_lshl_b32 s{sT0}, s{sQ}, 1"); A(f"s_add_u32 s{sT0}, s{sT0}, s{sC2}"); A(f"s_add_u32 s{sT0}, s{sT0}, s{sWF}"); A(f"s_lshl_b32 s{sT0}, s{sT0}, 12")
            A(f"s_lshl_b32 s{sT1}, s{sWR}, 1"); A(f"s_add_u32 s{sT0}, s{sT0}, s{sT1}")
            A(f"s_mul_i32 s{sT1}, s{sWF}, {CONVSZ}"); A(f"s_mul_i32 s{sT2}, s{sWR}, {O_OFF-E_OFF}"); A(f"s_add_u32 s{sT1}, s{sT1}, s{sT2}")
            for b in range(4):
                dma(vl16, SRD_SSM, f"s{sT0}", (sT1, CONV0+E_OFF+1024*b), "ssm")
                if b < 3: A(f"s_add_u32 s{sT0}, s{sT0}, 1024")
        for st in range(3):
            reads(tau, st+1)
            A.wait_lg(f"r{tau}_{st}")
            mfmas(tau, st)
    A("s_waitcnt lgkmcnt(0)")
    mfmas(6, 3)
    stamp()
    A(f"s_lshr_b32 s{sT0}, s{sQ}, 3"); A(f"s_lshl_b32 s{sT0}, s{sT0}, 7"); A(f"s_add_u32 s{sT0}, s{sT0}, s{sCG}"); A(f"s_add_u32 s{sT0}, s{sT0}, 128")
    A(f"v_lshlrev_b32 v{vt2}, 2, v{vl}")
    poll(vt2, f"s{sT0}", 32, sTAGC, vt)
    A(f"s_lshl_b32 s{sT0}, s{sQ}, 1"); A(f"s_add_u32 s{sT0}, s{sT0}, s{sC2}"); A(f"s_add_u32 s{sT0}, s{sT0}, s{sWF}"); A(f"s_lshl_b32 s{sT0}, s{sT0}, 12")
    A(f"s_lshl_b32 s{sT1}, s{sWR}, 11"); A(f"s_add_u32 s{sT0}, s{sT0}, s{sT1}"); A(f"s_add_u32 s{sT0}, s{sT0}, {WS_KVT}")
    A(f"s_mul_i32 s{sT2}, s{sWF}, {CONVSZ}"); A(f"s_add_u32 s{sT2}, s{sT2}, s{sT1}")
    dma(vl16, SRD_WS, f"s{sT0}", (sT2, CONV0+X_OFF), "kvt", "sc1"); A(f"s_add_u32 s{sT0}, s{sT0}, 1024")
    dma(vl16, SRD_WS, f"s{sT0}", (sT2, CONV0+X_OFF+1024), "kvt", "sc1")
    A(f"v_lshl_add_u32 v{vt}, v{vr32}, 1, v{vhi}"); A(f"v_lshlrev_b32 v{vt}, 2, v{vt}")
    A(f"s_lshl_b32 s{sT0}, s{sWR}, 9"); A(f"s_lshl_b32 s{sT1}, s{sWF}, 8"); A(f"s_add_u32 s{sT0}, s{sT0}, s{sT1}"); A(f"s_add_u32 s{sT0}, s{sT0}, {ST1}")
    A(f"s_lshl_b32 s{sT1}, s{sWF}, 9"); A(f"s_lshl_b32 s{sT2}, s{sWR}, 8"); A(f"s_add_u32 s{sT1}, s{sT1}, s{sT2}"); A(f"s_add_u32 s{sT1}, s{sT1}, {CSUM}")
    A(f"v_add_u32 v{vt1}, s{sT0}, v{vt}"); A(f"v_add_u32 v{vt2}, s{sT1}, v{vt}")
    A.ds(f"ds_write_b32 v{vt1}, v{rs}"); A.ds(f"ds_write_b32 v{vt1}, v{sq} offset:{ST2-ST1}"); A.ds(f"ds_write_b32 v{vt2}, v{cs}")
    A("s_waitcnt lgkmcnt(0)"); A("s_barrier")
    f0, f1 = fr
    A(f"v_lshlrev_b32 v{vt}, 3, v{vr32}"); A(f"v_add_u32 v{vt1}, s{sT0}, v{vt}"); A(f"v_add_u32 v{vt2}, s{sT1}, v{vt}")
    A(f"v_xor_b32 v{vt}, 256, v{vt1}"); A(f"v_xor_b32 v{vt3}, 256, v{vt2}")
    assert ST1 % 512 == 0 and CSUM % 512 == 0
    A.ds(f"ds_read_b64 v[{f1}:{f1+1}], v{vt2}"); A.ds(f"ds_read_b64 v[{f1+2}:{f1+3}], v{vt3}")
    A.ds(f"ds_read_b64 v[{f1+4}:{f1+5}], v{vt1}"); A.ds(f"ds_read_b64 v[{f1+6}:{f1+7}], v{vt}")
    A(f"v_cmp_eq_u32 vcc, 0, v{vhi}")
    for r in (2, 3, 6, 7, 10, 11, 14, 15): A(f"v_mov_b32 v{f0+r}, 0")
    A(f"s_mov_b32 s{sT2}, 0xbb124925")
    A("s_waitcnt lgkmcnt(0)")
    for t in range(2):
        c = f1 + 2*t; tmp = f1 + 8 + 2*t
        A(f"v_add_f32 v{c}, v{c}, v{c+1}")
        A(f"v_cndmask_b32 v{c}, 0, v{c}, vcc")
        A(f"v_and_b32 v{tmp}, 0xffff0000, v{c}"); A(f"v_sub_f32 v{c+1}, v{c}, v{tmp}")
        A(f"v_and_b32 v{tmp+1}, 0xffff0000, v{c+1}"); A(f"v_sub_f32 v{c+1}, v{c+1}, v{tmp+1}")
        A(f"v_lshrrev_b32 v{tmp}, 16, v{tmp}"); A(f"v_or_b32 v{f0+4*t}, v{tmp}, v{tmp+1}")
        A(f"v_lshrrev_b32 v{f0+4*t+1}, 16, v{c+1}")
        m = f1 + 4 + 2*t
        A(f"v_add_f32 v{m}, v{m}, v{m+1}"); A(f"v_mul_f32 v{m}, s{sT2}, v{m}")
        A(f"v_cvt_pk_bf16_f32 v{f0+8+4*t}, v{m}, v{m}"); A(f"v_mov_b32 v{f0+9+4*t}, v{f0+8+4*t}")
    A("s_nop 1")
    for ta in range(2):
        for tb in range(2):
            d = acc + 16*(2*ta+tb)
            A(f"v_mfma_f32_32x32x16_bf16 v[{d}:{d+15}], v[{f0+4*ta}:{f0+4*ta+3}], v[{f0+8+4*tb}:{f0+11+4*tb}], v[{d}:{d+15}]")
    A(f"v_lshrrev_b32 v{vt}, 4, v{vr32}"); A(f"v_mul_u32_u24 v{vt}, 57344, v{vt}"); A(f"v_lshl_add_u32 v{vt}, v{vhi}, 8, v{vt}"); A(f"v_lshl_add_u32 v{vt}, v{vidx}, 4, v{vt}")
    hp = V.get("hp", 32, 4)
    for ta in range(2):
        for tb in range(2):
            d = acc + 16*(2*ta+tb); p = hp + 8*(2*ta+tb)
            A(f"s_xor_b32 s{sT0}, s{sWF}, {tb}"); A(f"s_lshl_b32 s{sT0}, s{sT0}, 1"); A(f"s_lshl_b32 s{sT1}, s{sWR}, 2"); A(f"s_add_u32 s{sT0}, s{sT0}, s{sT1}")
            A(f"s_lshr_b32 s{sT1}, s{sR1}, 4"); A(f"s_add_u32 s{sT0}, s{sT0}, s{sT1}"); A(f"s_mul_i32 s{sT0}, s{sT0}, 56")
            A(f"s_xor_b32 s{sT1}, s{sWR}, {ta}"); A(f"s_add_u32 s{sT0}, s{sT0}, s{sT1}"); A(f"s_lshl_b32 s{sT1}, s{sWF}, 1"); A(f"s_add_u32 s{sT0}, s{sT0}, s{sT1}")
            A(f"s_lshr_b32 s{sT1}, s{sF1}, 5"); A(f"s_add_u32 s{sT0}, s{sT0}, s{sT1}"); A(f"s_lshl_b32 s{sT0}, s{sT0}, 10"); A(f"s_add_u32 s{sT0}, s{sT0}, {WS_H}")
            if ta == 0 and tb == 0: A("s_nop 7")
            for u in range(8): A(f"v_cvt_pk_bf16_f32 v{p+u}, v{d+2*u}, v{d+2*u+1}")
            for u in range(8): A(f"v_pk_max_i16 v{p+u}, v{p+u}, 0")
            A.vmem(f"buffer_store_dwordx4 v[{p}:{p+3}], v{vt}, s[{SRD_WS}:{SRD_WS+3}], s{sT0} offen sc1", "hst")
            A.vmem(f"buffer_store_dwordx4 v[{p+4}:{p+7}], v{vt}, s[{SRD_WS}:{SRD_WS+3}], s{sT0} offen offset:512 sc1", "hst")
    V.free("acc", "fr0", "fr1", "aB", "aA", "cs", "rs", "sq", "r32", "hi", "xe", "xo", "w1off", "ov")
    stamp()
    vw2 = V.get("w2off"); aW = V.get("aW", 4)
    A(f"v_lshrrev_b32 v{vt}, 3, v{vl}"); A(f"v_mul_u32_u24 v{vt}, 896, v{vt}")
    A(f"v_and_b32 v{vt1}, 7, v{vl}"); A(f"v_xor_b32 v{vt1}, v{vt1}, v{vg}"); A(f"v_lshl_add_u32 v{vw2}, v{vt1}, 4, v{vt}")
    A(f"v_lshrrev_b32 v{vt}, 2, v{vidx}")
    A(f"v_and_b32 v{vt1}, 1, v{vg}"); A(f"v_lshl_add_u32 v{vt}, v{vt1}, 2, v{vt}")
    A(f"v_lshrrev_b32 v{vt1}, 1, v{vt}")
    A(f"v_lshrrev_b32 v{vt2}, 1, v{vg}"); A(f"v_lshl_add_u32 v{vt}, v{vt2}, 4, v{vt}")
    A(f"v_bfe_u32 v{vt2}, v{vidx}, 1, 1"); A(f"v_lshl_add_u32 v{vt1}, v{vt2}, 2, v{vt1}")
    A(f"v_lshlrev_b32 v{vt1}, 4, v{vt1}"); A(f"v_lshl_add_u32 v{vt}, v{vt}, 7, v{vt1}")
    A(f"v_and_b32 v{vt1}, 1, v{vidx}"); A(f"v_lshl_add_u32 v{vt}, v{vt1}, 3, v{vt}")
    A(f"v_add_u32 v{aW}, s{sLB}, v{vt}")
    for f in range(1, 4): A(f"v_xor_b32 v{aW+f}, {f<<4}, v{aW}")
    A(f"s_lshl_b32 s{sROT2}, s{sRB}, 2"); A(f"s_mov_b32 s{sROT}, s{sROT2}")
    A(f"s_mul_i32 s{sWB}, s{sW}, {448*896}"); A(f"s_lshl_b32 s{sT0}, s{sC2}, 1"); A(f"s_add_u32 s{sWB}, s{sWB}, s{sT0}")
    def w2_dma(pi):
        A(f"s_mul_i32 s{sT0}, s{sROT}, {32*896}"); A(f"s_add_u32 s{sT0}, s{sT0}, s{sWB}")
        for b in range(4):
            dma(vw2, SRD_W2, f"s{sT0}", (sLB, (pi % 7)*4096 + b*1024), f"w{pi}")
            if b < 3: A(f"s_add_u32 s{sT0}, s{sT0}, {8*896}")
        A(f"s_add_u32 s{sROT}, s{sROT}, 1"); A(f"s_cmp_eq_u32 s{sROT}, 14"); A(f"s_cselect_b32 s{sROT}, 0, s{sROT}")
    def w2_read(pi):
        for f in range(4):
            for u in range(2):
                r = 16*pi + 4*f + 2*u
                A.ds(f"ds_read_b64_tr_b16 a[{r}:{r+1}], v{aW+f} offset:{(pi % 7)*4096 + 1024*u}", f"wr{pi}")
    for pi in range(7): w2_dma(pi)
    Y = V.get("Y", 32, 4)
    OA = [V.get("A0", 32, 4), V.get("A1", 32, 4)]; OB = [V.get("B0", 32, 4), V.get("B1", 32, 4)]
    aH = V.get("aH", 4); aX = V.get("aX"); AD = V.get("AD", 4, 4)
    A(f"s_mul_i32 s{sT0}, s{sWF}, {CONVSZ}"); A(f"s_lshl_b32 s{sT1}, s{sWR}, 8"); A(f"s_add_u32 s{sT0}, s{sT0}, s{sT1}"); A(f"s_add_u32 s{sT0}, s{sT0}, {CONV0}")
    A(f"v_and_b32 v{vt}, 1, v{vidx}"); A(f"v_cmp_eq_u32 vcc, 1, v{vt}"); A(f"v_mov_b32 v{vt1}, {O_OFF-32}"); A(f"v_mov_b32 v{vt2}, {E_OFF-30}")
    A(f"v_cndmask_b32 v{vt}, v{vt1}, v{vt2}, vcc")
    A(f"v_lshl_add_u32 v{vt}, v{vidx}, 1, v{vt}"); A(f"v_lshl_add_u32 v{vt}, v{vg}, 4, v{vt}"); A(f"v_add_u32 v{aH}, s{sT0}, v{vt}")
    for i in range(1, 4): A(f"v_add_u32 v{aH+i}, {1024*i}, v{aH}")
    A(f"v_lshlrev_b32 v{vt}, 5, v{vidx}"); A(f"v_lshlrev_b32 v{vt1}, 4, v{vg}"); A(f"v_sub_u32 v{vt}, v{vt1}, v{vt}")
    A(f"s_add_u32 s{sT0}, s{sT0}, {X_OFF+480}"); A(f"v_add_u32 v{aX}, s{sT0}, v{vt}")
    A(f"s_lshl_b32 s{sT0}, s{sWF}, 4"); A(f"s_lshr_b32 s{sT0}, s{sDD}, s{sT0}"); A(f"s_and_b32 s{sT0}, s{sT0}, 0xffff")
    A(f"s_cmp_eq_u32 s{sWR}, 0"); A(f"s_cselect_b32 s{sT0}, s{sT0}, 0")
    A(f"v_xor_b32 v{vt}, 15, v{vidx}")
    A(f"v_and_b32 v{vt1}, 1, v{vt}"); A(f"v_lshlrev_b32 v{vt1}, 4, v{vt1}"); A(f"v_lshlrev_b32 v{vt1}, v{vt1}, s{sT0}")
    A(f"v_lshrrev_b32 v{vt}, 1, v{vt}")
    A(f"v_lshlrev_b32 v{vt2}, 2, v{vg}"); A(f"v_sub_u32 v{vt}, v{vt}, v{vt2}")
    for r in range(4):
        A(f"v_cmp_eq_u32 vcc, {r}, v{vt}"); A("s_nop 1"); A(f"v_cndmask_b32 v{AD+r}, 0, v{vt1}, vcc")
    def conv_reads(u):
        out = []
        a, b = OA[u % 2], OB[u % 2]
        for j in range(8):
            o = (64*u + 512*(j & 1)) // 4
            out.append(f"ds_read_b128 v[{b+4*j}:{b+4*j+3}], v{aX} offset:{64*u+512*(7-j)}")
            out.append(f"ds_read2_b32 v[{a+4*j}:{a+4*j+1}], v{aH+(j>>1)} offset0:{o} offset1:{o+1}")
            out.append(f"ds_read2_b32 v[{a+4*j+2}:{a+4*j+3}], v{aH+(j>>1)} offset0:{o+2} offset1:{o+3}")
        return out
    A.wait_vm("kvt", " lgkmcnt(0)")
    A("s_barrier")
    stamp()
    for r in conv_reads(0): A.ds(r)
    w2_next_read = 0; w2_next_dma = 7
    for u in range(4):
        A.c(f"conv class {u}")
        A("s_waitcnt lgkmcnt(0)")
        a, b = OA[u % 2], OB[u % 2]
        mf = []
        if u == 0:
            for c in range(8): mf.append(f"v_mfma_f32_16x16x32_bf16 v[{Y+4*c}:{Y+4*c+3}], v[{AD}:{AD+3}], v[{b+4*c}:{b+4*c+3}], 0")
        for j in range(8):
            for c in range(j, 8):
                mf.append(f"v_mfma_f32_16x16x32_bf16 v[{Y+4*c}:{Y+4*c+3}], v[{a+4*j}:{a+4*j+3}], v[{b+4*(c-j)}:{b+4*(c-j)+3}], v[{Y+4*c}:{Y+4*c+3}]")
        side = conv_reads(u+1) if u < 3 else []
        for i, m in enumerate(mf):
            A(m)
            if i < len(side): A.ds(side[i])
        if u == 1:
            A.wait_vm("hst")
            A(f"s_lshr_b32 s{sT0}, s{sF1}, 6"); A(f"s_add_u32 s{sT0}, s{sT0}, s{sWF}"); A(f"s_lshl_b32 s{sT0}, s{sT0}, 2")
            A(f"s_lshl_b32 s{sT1}, s{sWR}, 7"); A(f"s_add_u32 s{sT0}, s{sT0}, s{sT1}"); A(f"s_add_u32 s{sT0}, s{sT0}, s{sHG}"); A(f"s_add_u32 s{sT0}, s{sT0}, 128")
            flag_store(f"s{sT0}", sTAGH, vz, vt)
        if u >= 1:
            for _ in range(2):
                pi = w2_next_read
                A.wait_vm(f"w{pi}"); w2_read(pi); w2_next_read += 1
            A("s_waitcnt lgkmcnt(0)")
            for _ in range(2):
                if w2_next_dma < 14: w2_dma(w2_next_dma); w2_next_dma += 1
    V.free("hp")
    stamp()
    A(f"s_add_u32 s{sT0}, s{sLB}, 28672"); A(f"v_add_u32 v{vt}, s{sT0}, v{vl16}"); A(f"v_xor_b32 v{vt1}, 0x8000, v{vt}")
    la, lb = A.newlabel("RED"), A.newlabel("RED")
    R = OA[0]; Yf = OB[0]
    A("s_nop 7")
    A(f"s_cmp_eq_u32 s{sWR}, 0"); A(f"s_cbranch_scc1 {la}")
    for c in range(4): A(f"ds_write_b128 v{vt}, v[{Y+4*c}:{Y+4*c+3}] offset:{1024*c}")
    for r in range(16): A(f"v_mov_b32 v{Yf+r}, v{Y+16+r}")
    A(f"s_branch {lb}")
    A.label(la)
    for c in range(4): A(f"ds_write_b128 v{vt}, v[{Y+16+4*c}:{Y+16+4*c+3}] offset:{1024*c}")
    for r in range(16): A(f"v_mov_b32 v{Yf+r}, v{Y+r}")
    A.label(lb)
    A("s_waitcnt lgkmcnt(0)"); A("s_barrier")
    for c in range(4): A.ds(f"ds_read_b128 v[{R+4*c}:{R+4*c+3}], v{vt1} offset:{1024*c}")
    A(f"s_xor_b32 s{sT0}, s{sT0}, 0x8000"); A(f"v_lshlrev_b32 v{vt2}, 5, v{vidx}"); A(f"v_lshl_add_u32 v{vt2}, v{vg}, 3, v{vt2}"); A(f"v_add_u32 v{vt2}, s{sT0}, v{vt2}")
    A("s_waitcnt lgkmcnt(0)")
    for r in range(16): A(f"v_add_f32 v{Yf+r}, v{Yf+r}, v{R+r}")
    for r in range(8): A(f"v_cvt_pk_bf16_f32 v{R+r}, v{Yf+2*r}, v{Yf+2*r+1}")
    for c in range(4): A.ds(f"ds_write_b64 v{vt2}, v[{R+2*c}:{R+2*c+1}] offset:{512*c}")
    A("s_waitcnt lgkmcnt(0)")
    A.ds(f"ds_read_b128 v[{R+8}:{R+11}], v{vt1}"); A.ds(f"ds_read_b128 v[{R+12}:{R+15}], v{vt1} offset:1024")
    A(f"s_lshl_b32 s{sT0}, s{sQ}, 1"); A(f"s_add_u32 s{sT0}, s{sT0}, s{sC2}"); A(f"s_add_u32 s{sT0}, s{sT0}, s{sWF}"); A(f"s_lshl_b32 s{sT0}, s{sT0}, 12")
    A(f"s_lshl_b32 s{sT1}, s{sWR}, 11"); A(f"s_add_u32 s{sT0}, s{sT0}, s{sT1}"); A(f"s_add_u32 s{sT0}, s{sT0}, {WS_YT}")
    A("s_waitcnt lgkmcnt(0)")
    A.vmem(f"buffer_store_dwordx4 v[{R+8}:{R+11}], v{vl16}, s[{SRD_WS}:{SRD_WS+3}], s{sT0} offen sc1", "yst")
    A.vmem(f"buffer_store_dwordx4 v[{R+12}:{R+15}], v{vl16}, s[{SRD_WS}:{SRD_WS+3}], s{sT0} offen offset:1024 sc1", "yst")
    while w2_next_read < 14:
        pi = w2_next_read
        A.wait_vm(f"w{pi}"); w2_read(pi); w2_next_read += 1
        if w2_next_dma < 14:
            A("s_waitcnt lgkmcnt(0)"); w2_dma(w2_next_dma); w2_next_dma += 1
    A.wait_vm("yst")
    A(f"s_lshl_b32 s{sT0}, s{sQ}, 1"); A(f"s_add_u32 s{sT0}, s{sT0}, s{sWF}"); A(f"s_lshl_b32 s{sT0}, s{sT0}, 2")
    A(f"s_lshl_b32 s{sT1}, s{sWR}, 8"); A(f"s_add_u32 s{sT0}, s{sT0}, s{sT1}"); A(f"s_add_u32 s{sT0}, s{sT0}, s{sCG}"); A(f"s_add_u32 s{sT0}, s{sT0}, 768")
    flag_store(f"s{sT0}", sTAGC, vz, vt)
    V.free("Y", "A0", "A1", "B0", "B1", "aH", "aX", "AD", "w2off", "aW")
    stamp()
    A(f"s_mul_i32 s{sT0}, s{sW}, 28"); A(f"s_lshl_b32 s{sT1}, s{sFH}, 7"); A(f"s_add_u32 s{sT0}, s{sT0}, s{sT1}"); A(f"s_add_u32 s{sT0}, s{sT0}, s{sHG}"); A(f"s_add_u32 s{sT0}, s{sT0}, 128")
    A(f"v_lshlrev_b32 v{vt2}, 2, v{vl}")
    poll(vt2, f"s{sT0}", 7, sTAGH, vt)
    stamp()
    NH = 42
    H = V.get("H", 4*NH, 4); G = [V.get("G0", 16, 4), V.get("G1", 16, 4)]
    A(f"s_add_u32 s{sOWN}, s{sW}, s{sFB}"); A(f"s_and_b32 s{sOWN}, s{sOWN}, 3")
    def h_load(n):
        tau, pi = divmod(n, 14)
        if pi == 0:
            A(f"s_add_u32 s{sT0}, s{sOWN}, {1+tau}"); A(f"s_and_b32 s{sT0}, s{sT0}, 3"); A(f"s_lshr_b32 s{sT1}, s{sR2}, 4"); A(f"s_add_u32 s{sT0}, s{sT0}, s{sT1}")
            A(f"s_lshl_b32 s{sT0}, s{sT0}, 2"); A(f"s_add_u32 s{sT0}, s{sT0}, s{sW}"); A(f"s_mul_i32 s{sXB}, s{sT0}, {14*1024}"); A(f"s_add_u32 s{sXB}, s{sXB}, {WS_H}")
            A(f"s_lshl_b32 s{sROT}, s{sROT2}, 10")
        r = H + 4*(n % NH)
        A(f"s_add_u32 s{sT0}, s{sXB}, s{sROT}")
        A.vmem(f"buffer_load_dwordx4 v[{r}:{r+3}], v{vl16}, s[{SRD_WS}:{SRD_WS+3}], s{sT0} offen sc1", f"h{n}")
        A(f"s_add_u32 s{sROT}, s{sROT}, 1024"); A(f"s_cmp_eq_u32 s{sROT}, {14*1024}"); A(f"s_cselect_b32 s{sROT}, 0, s{sROT}")
    LOOK = 12
    nload = 0
    while nload < LOOK: h_load(nload); nload += 1
    vxo2 = V.get("xo2")
    A(f"v_lshrrev_b32 v{vt}, 3, v{vl}"); A(f"v_and_b32 v{vt1}, 7, v{vl}"); A(f"v_xor_b32 v{vt1}, v{vt1}, v{vt}")
    A(f"v_mul_u32_u24 v{vt}, 896, v{vt}"); A(f"v_lshl_add_u32 v{vxo2}, v{vt1}, 4, v{vt}")
    A(f"s_lshl_b32 s{sT0}, s{sOWN}, 4"); A(f"s_add_u32 s{sT0}, s{sT0}, s{sR2}"); A(f"s_mul_i32 s{sWB}, s{sT0}, 896"); A(f"s_lshl_b32 s{sT0}, s{sC2}, 1"); A(f"s_add_u32 s{sWB}, s{sWB}, s{sT0}")
    A(f"s_add_u32 s{sT1}, s{sWB}, {8*896}")
    A("s_waitcnt lgkmcnt(0)")
    dma(vxo2, SRD_X, f"s{sWB}", (sLB, 16384), "xt"); dma(vxo2, SRD_X, f"s{sT1}", (sLB, 17408), "xt")
    vob = V.get("outbox"); A(f"v_add_u32 v{vob}, s{sLB}, v{vl16}")
    P = V.get("P", 16, 4); P2 = V.get("P2", 16, 4)
    for tau in range(4):
        g = G[tau % 2]
        for pi in range(14):
            n = 14*tau + pi
            A.wait_vm(f"h{n}")
            r = H + 4*(n % NH)
            for f in range(4):
                A(f"v_mfma_f32_16x16x32_bf16 v[{g+4*f}:{g+4*f+3}], a[{16*pi+4*f}:{16*pi+4*f+3}], v[{r}:{r+3}], " + ("0" if pi == 0 else f"v[{g+4*f}:{g+4*f+3}]"))
            if nload < 56: h_load(nload); nload += 1
            if pi == 2 and tau >= 1:
                gp = G[(tau-1) % 2]
                for f in range(4): A.ds(f"ds_write_b128 v{vob}, v[{gp+4*f}:{gp+4*f+3}] offset:{4096*(tau-1)+1024*f}")
            if pi == 4 and tau == 3:
                A("s_waitcnt lgkmcnt(0)"); A("s_barrier")
                for t in range(3):
                    A(f"s_sub_u32 s{sT0}, s{sW}, {1+t}"); A(f"s_and_b32 s{sT0}, s{sT0}, 3"); A(f"s_lshl_b32 s{sT0}, s{sT0}, 15")
                    A(f"v_add_u32 v{vt}, s{sT0}, v{vl16}")
                    dst = [P, P2, G[0]][t]
                    for f in range(4): A.ds(f"ds_read_b128 v[{dst+4*f}:{dst+4*f+3}], v{vt} offset:{4096*t+1024*f}")
            if pi == 8 and tau == 3:
                A("s_waitcnt lgkmcnt(0)")
                for r2 in range(16): A(f"v_add_f32 v{P+r2}, v{P+r2}, v{P2+r2}")
                for r2 in range(16): A(f"v_add_f32 v{P+r2}, v{P+r2}, v{G[0]+r2}")
    stamp()
    A(f"s_lshr_b32 s{sT0}, s{sR2}, 10"); A(f"s_lshl_b32 s{sT0}, s{sT0}, 8"); A(f"s_lshl_b32 s{sT1}, s{sW}, 6"); A(f"s_add_u32 s{sT0}, s{sT0}, s{sT1}")
    A(f"s_add_u32 s{sT0}, s{sT0}, s{sCG}"); A(f"s_add_u32 s{sT0}, s{sT0}, 768")
    A(f"v_lshlrev_b32 v{vt2}, 2, v{vl}")
    poll(vt2, f"s{sT0}", 16, sTAGC, vt)
    A(f"v_lshrrev_b32 v{vt}, 3, v{vl}"); A(f"v_lshlrev_b32 v{vt}, 12, v{vt}"); A(f"v_and_b32 v{vt1}, 7, v{vl}"); A(f"v_lshlrev_b32 v{vt2}, 1, v{vg}"); A(f"v_xor_b32 v{vt1}, v{vt1}, v{vt2}")
    A(f"v_lshl_add_u32 v{vt}, v{vt1}, 4, v{vt}")
    A(f"s_lshl_b32 s{sT0}, s{sW}, 4"); A(f"s_add_u32 s{sT0}, s{sT0}, s{sC2}"); A(f"s_lshl_b32 s{sT0}, s{sT0}, 12"); A(f"s_lshl_b32 s{sT1}, s{sR2}, 1"); A(f"s_add_u32 s{sT0}, s{sT0}, s{sT1}")
    A(f"s_add_u32 s{sT0}, s{sT0}, {WS_YT}"); A(f"s_add_u32 s{sT1}, s{sT0}, {8*4096}")
    dma(vt, SRD_WS, f"s{sT0}", (sLB, 20480), "yt", "sc1"); dma(vt, SRD_WS, f"s{sT1}", (sLB, 21504), "yt", "sc1")
    X = H; Yv = H + 8; ST = H + 16; U = H + 24
    A(f"s_lshl_b32 s{sT0}, s{sFH}, 2"); A(f"s_add_u32 s{sT0}, s{sT0}, s{sOWN}"); A(f"s_lshl_b32 s{sT0}, s{sT0}, 7"); A(f"s_add_u32 s{sT0}, s{sT0}, {ST1}")
    A(f"v_lshl_add_u32 v{vt1}, v{vidx}, 3, s{sT0}")
    A.ds(f"ds_read_b64 v[{ST}:{ST+1}], v{vt1}"); A.ds(f"ds_read_b64 v[{ST+2}:{ST+3}], v{vt1} offset:{ST2-ST1}")
    vxa = V.get("xa", 4)
    A(f"v_lshrrev_b32 v{vt1}, 1, v{vg}"); A(f"v_lshlrev_b32 v{vt1}, 2, v{vt1}"); A(f"v_and_b32 v{vt2}, 7, v{vidx}"); A(f"v_xor_b32 v{vt1}, v{vt1}, v{vt2}")
    A(f"v_lshlrev_b32 v{vt1}, 4, v{vt1}"); A(f"v_lshl_add_u32 v{vt1}, v{vidx}, 7, v{vt1}"); A(f"v_and_b32 v{vt2}, 1, v{vg}"); A(f"v_lshl_add_u32 v{vt1}, v{vt2}, 3, v{vt1}")
    A(f"s_add_u32 s{sT0}, s{sLB}, 16384"); A(f"v_add_u32 v{vxa}, s{sT0}, v{vt1}")
    for f in range(1, 4): A(f"v_xor_b32 v{vxa+f}, {f<<4}, v{vxa}")
    for f in range(4): A.ds(f"ds_read_b64 v[{X+2*f}:{X+2*f+1}], v{vxa+f}")
    for r2 in range(16): A(f"v_add_f32 v{P+r2}, v{P+r2}, v{G[1]+r2}")
    A("s_waitcnt lgkmcnt(0)")
    A(f"s_mov_b32 s{sT0}, 0x3b124925")
    A(f"v_add_f32 v{ST}, v{ST}, v{ST+1}"); A(f"v_add_f32 v{ST+2}, v{ST+2}, v{ST+3}")
    A(f"v_mul_f32 v{ST}, s{sT0}, v{ST}"); A(f"v_mul_f32 v{ST+2}, s{sT0}, v{ST+2}")
    A(f"v_fma_f32 v{ST+2}, -v{ST}, v{ST}, v{ST+2}"); A(f"v_max_f32 v{ST+2}, 0, v{ST+2}")
    def rbf(r):
        A(f"v_cvt_pk_bf16_f32 v{r}, v{r}, v{r}"); A(f"v_and_b32 v{r}, 0xffff0000, v{r}")
    rbf(ST); rbf(ST+2)
    A(f"v_add_f32 v{ST+2}, 0x3727c5ac, v{ST+2}"); rbf(ST+2)
    A(f"v_sqrt_f32 v{ST+2}, v{ST+2}"); A("s_nop 0"); rbf(ST+2)
    A(f"v_rcp_f32 v{ST+2}, v{ST+2}")
    for f in range(4):
        for e in range(2):
            A(f"v_lshlrev_b32 v{U+4*f+2*e}, 16, v{X+2*f+e}"); A(f"v_and_b32 v{U+4*f+2*e+1}, 0xffff0000, v{X+2*f+e}")
    A(f"v_lshrrev_b32 v{vt}, 2, v{vidx}"); A(f"v_and_b32 v{vt1}, 1, v{vg}"); A(f"v_lshl_add_u32 v{vt}, v{vt1}, 2, v{vt}")
    A(f"v_and_b32 v{vt1}, 6, v{vt}"); A(f"s_lshl_b32 s{sT0}, s{sOWN}, 1"); A(f"v_xor_b32 v{vt1}, s{sT0}, v{vt1}")
    A(f"v_lshlrev_b32 v{vt1}, 4, v{vt1}"); A(f"v_lshl_add_u32 v{vt}, v{vt}, 7, v{vt1}")
    A(f"v_and_b32 v{vt1}, 3, v{vidx}"); A(f"v_lshl_add_u32 v{vt}, v{vt1}, 3, v{vt}")
    A(f"v_lshrrev_b32 v{vt1}, 1, v{vg}"); A(f"v_lshl_add_u32 v{vt}, v{vt1}, 16, v{vt}")
    A.wait_vm("yt"); A("s_barrier")
    for f in range(4): A.ds(f"ds_read_b64_tr_b16 v[{Yv+2*f}:{Yv+2*f+1}], v{vt} offset:{20480 + (f>>1)*32768 + (f&1)*1024}")
    T = P2
    for r2 in range(16): A(f"v_sub_f32 v{T+r2}, v{U+r2}, v{ST}")
    A("s_waitcnt lgkmcnt(0)")
    W = G[0]
    for f in range(4):
        for e in range(2):
            A(f"v_lshlrev_b32 v{W+4*f+2*e}, 16, v{Yv+2*f+e}"); A(f"v_and_b32 v{W+4*f+2*e+1}, 0xffff0000, v{Yv+2*f+e}")
    for r2 in range(16): A(f"v_fma_f32 v{P+r2}, v{T+r2}, v{W+r2}, v{P+r2}")
    for r2 in range(16): A(f"v_fma_f32 v{P+r2}, v{P+r2}, v{ST+2}, v{U+r2}")
    for r2 in range(8): A(f"v_cvt_pk_bf16_f32 v{X+r2}, v{P+2*r2}, v{P+2*r2+1}")
    for f in range(4): A.ds(f"ds_write_b64 v{vxa+f}, v[{X+2*f}:{X+2*f+1}]")
    A("s_waitcnt lgkmcnt(0)")
    A.ds(f"ds_read_b128 v[{W}:{W+3}], v{vob} offset:16384"); A.ds(f"ds_read_b128 v[{W+4}:{W+7}], v{vob} offset:17408")
    A(f"s_add_u32 s{sT1}, s{sWB}, {8*896}")
    A("s_waitcnt lgkmcnt(0)")
    A.vmem(f"buffer_store_dwordx4 v[{W}:{W+3}], v{vxo2}, s[{SRD_OUT}:{SRD_OUT+3}], s{sWB} offen", "out")
    A.vmem(f"buffer_store_dwordx4 v[{W+4}:{W+7}], v{vxo2}, s[{SRD_OUT}:{SRD_OUT+3}], s{sT1} offen", "out")
    le, le2 = A.newlabel("EP"), A.newlabel("EP")
    A(f"s_cmp_lg_u32 s{sW}, 0"); A(f"s_cbranch_scc1 {le2}")
    A(f"s_cmp_lg_u32 s{sQ}, 0"); A(f"s_cbranch_scc1 {le}")
    flag_store(f"s{sCG}", sTAGC, vz, vt)
    A.label(le)
    A(f"s_cmp_lg_u32 s{sF1}, 0"); A(f"s_cbranch_scc1 {le2}")
    flag_store(f"s{sHG}", sTAGH, vz, vt1)
    A.label(le2)
    if stamps:
        A("s_waitcnt vmcnt(0)")
        stamp()
        A("s_memrealtime s[16:17]"); A("s_waitcnt lgkmcnt(0)")
        A(f"s_lshl_b32 s{sT0}, s2, 2"); A(f"s_add_u32 s{sT0}, s{sT0}, s{sW}"); A(f"s_lshl_b32 s{sT0}, s{sT0}, 6"); A(f"s_add_u32 s{sT0}, s{sT0}, {WS_DBG}")
        A("s_mov_b64 exec, 1")
        for i in range(nst[0]):
            A(f"v_mov_b32 v{vt}, s{sST+i}"); A(f"buffer_store_dword v{vt}, v{vz}, s[{SRD_WS}:{SRD_WS+3}], s{sT0} offen offset:{4*i}")
        A(f"v_mov_b32 v{vt}, s16"); A(f"buffer_store_dword v{vt}, v{vz}, s[{SRD_WS}:{SRD_WS+3}], s{sT0} offen offset:60")
    A.label("L_end")
    A("s_endpgm")
    A.raw(f".fill (33024 - (. - {KNAME}))/4, 4, 0xbf810000")
    A.raw('.section .rodata,"a"'); A.raw(".p2align 6"); A.raw(f".amdhsa_kernel {KNAME}")
    for l in ["next_free_vgpr 512", "next_free_sgpr 102", "accum_offset 256", "group_segment_fixed_size 0", "kernarg_size 96",
              "user_sgpr_count 2", "user_sgpr_kernarg_segment_ptr 1", "system_sgpr_workgroup_id_x 1", "float_denorm_mode_32 3"]:
        A.raw("  .amdhsa_" + l)
    A.raw(".end_amdhsa_kernel")
    return A.text(), nst[0]

if __name__ == "__main__":
    t, n = gen(stamps=False); open("k1.s", "w").write(t)
    t, n = gen(stamps=True); open("k1_st.s", "w").write(t); print("stamps", n)
```

```python
import sys
from asmlib import *
KNAME = "parallel_sum__ssm_conv_h3__dense_activation_relu__prompt_kernel"
S, D, F = 2048, 448, 1792
NMAIN, NWG = 224, 256
TAGC = 0x9E3779B9
WS_KVT, WS_YT, WS_H, WS_DBG, WS_SIZE = 1<<20, 3<<20, 5<<20, 14<<20, 16<<20
CONV0, CONVSZ = 131072, 12928
E_OFF, O_OFF, X_OFF = 64, 4224, 8320
ST1, ST2, CSUM, LFL = 157184, 157696, 158208, 158720
LF_PAIR, LF_Y, LF_P = LFL, LFL+16, LFL+32
POFF = [14336, 18688, 23040, 0]
OUTBOX = 28672
LDS_TOTAL = 163840
SPIN = 100000
CODEPAD = 24576

SRD_X, SRD_K, SRD_V, SRD_SSM, SRD_W1, SRD_W2, SRD_OUT, SRD_WS = 28, 32, 36, 40, 44, 48, 52, 56
sW, sFB, sRB, sFH, sR1, sF1, sR2, sC2, sQ, sB64, sTAGC, sTAGH, sCG, sHG, sROT, sLB, sCH, sWR, sWF, sXCD = range(60, 80)
sT0, sT1, sT2, sT3 = range(80, 84)
sU = list(range(84, 102))

class Cfg:
    stamps = False
    rot = True
    w2_p1 = {1:1, 2:1, 3:1, 4:1, 5:1, 6:1}
    ssm_at = 3
    look = 10
    helper_w2_stage2 = True
    helper_delay = 0
    hflag_after = 1
    out_sc = ""
    prioA = 2
    def __init__(self, **k):
        for a, b in k.items(): setattr(self, a, b)

def gen(cfg):
    A = Asm()
    stamps = cfg.stamps
    nst = {"A": 0, "B": 0}
    def stamp(role, vst):
        if not stamps: return
        A("s_memtime s[16:17]"); A("s_waitcnt lgkmcnt(0)"); A(f"v_writelane_b32 v{vst}, s16, {nst[role]}"); nst[role] += 1
    def stamp_dump(vst, vtmp):
        if not stamps: return
        A("s_waitcnt vmcnt(0)")
        A("s_memtime s[16:17]"); A("s_waitcnt lgkmcnt(0)"); A(f"v_writelane_b32 v{vst}, s16, 61")
        A("s_memrealtime s[16:17]"); A("s_waitcnt lgkmcnt(0)"); A(f"v_writelane_b32 v{vst}, s16, 63"); A(f"v_writelane_b32 v{vst}, s3, 62")
        A(f"v_mbcnt_lo_u32_b32 v{vtmp}, -1, 0"); A(f"v_mbcnt_hi_u32_b32 v{vtmp}, -1, v{vtmp}"); A(f"v_lshlrev_b32 v{vtmp}, 2, v{vtmp}")
        A(f"s_lshl_b32 s{sT0}, s2, 3"); A(f"s_add_u32 s{sT0}, s{sT0}, s24"); A(f"s_lshl_b32 s{sT0}, s{sT0}, 8"); A(f"s_add_u32 s{sT0}, s{sT0}, {WS_DBG}")
        A(f"buffer_store_dword v{vst}, v{vtmp}, s[{SRD_WS}:{SRD_WS+3}], s{sT0} offen")
    def srd(b, p, n):
        A(f"s_mov_b32 s{b}, s{p}"); A(f"s_and_b32 s{b+1}, s{p+1}, 0xffff"); A(f"s_mov_b32 s{b+2}, {n}"); A(f"s_mov_b32 s{b+3}, 0x20000")
    def m0(sr, imm):
        A(f"s_add_u32 m0, s{sr}, {imm}" if sr is not None else f"s_mov_b32 m0, {imm}")
    def dma(voff, srdb, soff, off, tag, sc=""):
        o = f" offset:{off}" if off else ""
        A.vmem(f"buffer_load_dwordx4 v{voff}, s[{srdb}:{srdb+3}], {soff} offen{o}{' '+sc if sc else ''} lds", tag)
    def setexec(nl):
        A(f"s_mov_b64 exec, {(1<<nl)-1}" if nl <= 6 else ("s_mov_b64 exec, -1" if nl == 64 else f"s_bfm_b64 exec, {nl}, 0"))
    def poll(vaddr, soff, nl, tagreg, vtmp):
        lp, lx = A.newlabel("POLL"), A.newlabel("POLLX")
        if nl < 64: setexec(nl)
        A(f"s_mov_b32 s{sT3}, 0")
        A.label(lp)
        A(f"buffer_load_dword v{vtmp}, v{vaddr}, s[{SRD_WS}:{SRD_WS+3}], {soff} offen sc1")
        A("s_waitcnt vmcnt(0)")
        A(f"v_cmp_ne_u32 vcc, s{tagreg}, v{vtmp}")
        A(f"s_add_u32 s{sT3}, s{sT3}, 1"); A(f"s_cmp_gt_u32 s{sT3}, {SPIN}"); A(f"s_cbranch_scc1 {lx}")
        A(f"s_cbranch_vccnz {lp}")
        A.label(lx)
        if nl < 64: A("s_mov_b64 exec, -1")
        A.vm.append("poll")
    def flag_store(soff, vtag, vz):
        A("s_mov_b64 exec, 1")
        A.vmem(f"buffer_store_dword v{vtag}, v{vz}, s[{SRD_WS}:{SRD_WS+3}], {soff} offen sc1", "flag")
        A("s_mov_b64 exec, -1")
    def lds_signal(vaddr, off, vone):
        A("s_mov_b64 exec, 1"); A.ds(f"ds_add_u32 v{vaddr}, v{vone} offset:{off}"); A("s_mov_b64 exec, -1")
    def lds_wait(vaddr, off, n, vtmp, sleep=1):
        lp, lx = A.newlabel("LW"), A.newlabel("LWX")
        A(f"s_mov_b32 s{sT3}, 0")
        A.label(lp)
        A(f"ds_read_b32 v{vtmp}, v{vaddr} offset:{off}"); A(f"s_add_u32 s{sT3}, s{sT3}, 1"); A("s_waitcnt lgkmcnt(0)")
        A(f"v_readfirstlane_b32 s{sT2}, v{vtmp}")
        A(f"s_cmp_gt_u32 s{sT3}, {SPIN*8}"); A(f"s_cbranch_scc1 {lx}")
        A(f"s_cmp_ge_u32 s{sT2}, {n}"); A(f"s_cbranch_scc1 {lx}")
        if sleep: A(f"s_sleep {sleep}")
        A(f"s_branch {lp}")
        A.label(lx)

    A.raw(f"; @launch grid=({NWG},1,1) block=(512,1,1) lds={LDS_TOTAL}")
    A.raw('.amdgcn_target "amdgcn-amd-amdhsa--gfx950"')
    A.raw(".text"); A.raw(f".globl {KNAME}"); A.raw(".p2align 8"); A.raw(f".type {KNAME},@function"); A.raw(f"{KNAME}:")
    A("s_load_dwordx16 s[4:19], s[0:1], 0")
    A("s_load_dwordx8 s[20:27], s[0:1], 64")
    A(f"s_getpc_b64 s[{sU[0]}:{sU[1]}]")
    A(f"s_cmp_ge_u32 s2, {NWG}"); A("s_cbranch_scc1 L_end")
    if stamps:
        A("s_memrealtime s[100:101]")
    A("v_lshrrev_b32 v2, 6, v0"); A("v_and_b32 v1, 63, v0")
    A(f"v_readfirstlane_b32 s{sT3}, v2")
    A(f"s_and_b32 s{sXCD}, s2, 7"); A(f"s_lshr_b32 s{sT1}, s2, 3")
    A(f"s_cmp_ge_u32 s2, {NMAIN}"); A("s_cbranch_scc1 L_helper")
    A(f"s_and_b32 s{sW}, s{sT3}, 3")
    A(f"s_mul_i32 s{sRB}, s{sT1}, 37"); A(f"s_lshr_b32 s{sRB}, s{sRB}, 8")
    A(f"s_mul_i32 s{sT2}, s{sRB}, 7"); A(f"s_sub_u32 s{sFB}, s{sT1}, s{sT2}")
    A(f"s_and_b32 s{sFH}, s{sXCD}, 1"); A(f"s_lshr_b32 s{sT1}, s{sXCD}, 1")
    A(f"s_lshl2_add_u32 s{sR1}, s{sT1}, s{sRB}")
    A(f"s_lshl_b32 s{sHG}, s{sR1}, 9"); A(f"s_add_u32 s{sHG}, s{sHG}, 16384")
    A(f"s_lshl1_add_u32 s{sB64}, s{sR1}, s{sFH}")
    A(f"s_lshl_b32 s{sR1}, s{sR1}, 7"); A(f"s_lshl_b32 s{sR2}, s{sB64}, 6")
    A(f"s_mul_i32 s{sF1}, s{sFH}, 7"); A(f"s_add_u32 s{sF1}, s{sF1}, s{sFB}"); A(f"s_lshl_b32 s{sF1}, s{sF1}, 7")
    A(f"s_lshl_b32 s{sC2}, s{sFB}, 6")
    A(f"s_lshl2_add_u32 s{sQ}, s{sXCD}, s{sRB}")
    A(f"s_lshl_b32 s{sCG}, s{sFB}, 11")
    if cfg.rot:
        A(f"s_lshl1_add_u32 s{sROT}, s{sRB}, s{sFB}"); A(f"s_add_u32 s{sROT}, s{sROT}, s{sT1}")
        for _ in range(2):
            A(f"s_cmp_ge_u32 s{sROT}, 7"); A(f"s_cselect_b32 s{sT2}, 7, 0"); A(f"s_sub_u32 s{sROT}, s{sROT}, s{sT2}")
    else:
        A(f"s_mov_b32 s{sROT}, 0")
    A(f"s_and_b32 s{sWR}, s{sW}, 1"); A(f"s_lshr_b32 s{sWF}, s{sW}, 1")
    A(f"s_lshl_b32 s{sLB}, s{sW}, 15")
    A(f"s_lshl1_add_u32 s{sCH}, s{sQ}, s{sC2}"); A(f"s_add_u32 s{sCH}, s{sCH}, s{sWF}")
    A(f"s_cmp_lt_u32 s{sT3}, 4"); A("s_cbranch_scc1 L_A")

    vST = 0
    vL16, vx, vw, vw2o, aW = 1, 2, 6, 10, 12
    t0, t1, t2, t3 = 16, 17, 18, 19
    sKV, sX, sWo, sW2, sK4, sK8, sK12, sXB, sWB, sPEND = sU[0:10]
    A(f"v_lshrrev_b32 v{t0}, 4, v1")
    A(f"v_lshrrev_b32 v{t1}, 3, v1"); A(f"v_mul_u32_u24 v{t1}, 896, v{t1}")
    A(f"v_and_b32 v{t2}, 7, v1"); A(f"v_xor_b32 v{t2}, v{t2}, v{t0}")
    A(f"v_lshl_add_u32 v{vx}, v{t2}, 4, v{t1}")
    A(f"v_add_u32 v{vw2o}, 6144, v{vx}"); A(f"v_xor_b32 v{vx+1}, 64, v{vw2o}")
    A(f"v_add_u32 v{vx+2}, {2*6144}, v{vx}"); A(f"v_add_u32 v{vw2o+1}, {3*6144}, v{vx}"); A(f"v_xor_b32 v{vx+3}, 64, v{vw2o+1}")
    A(f"v_lshlrev_b32 v{t1}, 2, v{t0}"); A(f"v_and_b32 v{t2}, 15, v1"); A(f"v_xor_b32 v{t1}, v{t1}, v{t2}")
    A(f"v_mul_u32_u24 v{t3}, 3584, v{t0}"); A(f"v_lshl_add_u32 v{vw}, v{t1}, 4, v{t3}")
    for b in range(1, 4): A(f"v_add_u32 v{vw+b}, {b*(4*3584-1024)}, v{vw}")
    A(f"s_lshl4_add_u32 s{sT0}, s{sW}, s{sR2}"); A(f"s_mul_i32 s{sKV}, s{sT0}, 896"); A(f"s_lshl1_add_u32 s{sKV}, s{sC2}, s{sKV}")
    A(f"s_sub_u32 s{sT1}, s{sKV}, {8*896}"); A(f"v_add_u32 v{t3}, s{sT1}, v{vx}")
    A(f"s_lshl_b32 s{sT0}, s{sW}, 5"); A(f"s_add_u32 s{sT0}, s{sT0}, s{sR1}"); A(f"s_mul_i32 s{sXB}, s{sT0}, 896")
    A(f"s_mul_i32 s{sWB}, s{sW}, {16*3584}"); A(f"s_lshl1_add_u32 s{sWB}, s{sF1}, s{sWB}")
    A("s_waitcnt lgkmcnt(0)")
    if stamps:
        A("s_mov_b32 s3, s100"); A(f"s_mov_b32 s24, s{sT3}")
    stamp("B", vST)
    srd(SRD_K, 6, S*D*2); srd(SRD_V, 8, S*D*2)
    m0(sLB, 16384); A(f"s_mov_b32 s{SRD_X}, s4")
    dma(vx, SRD_K, f"s{sKV}", 0, "kv"); dma(vx+1, SRD_K, f"s{sKV}", 1024, "kv")
    m0(sLB, 16384+2048); A(f"s_and_b32 s{SRD_X+1}, s5, 0xffff")
    dma(vx, SRD_V, f"s{sKV}", 0, "kv"); dma(vx+1, SRD_V, f"s{sKV}", 1024, "kv")
    m0(sLB, 16384+4096); A(f"s_mov_b32 s{SRD_X+2}, {S*D*2}")
    dma(t3, SRD_K, "0", 0, "kv")
    A(f"s_mov_b32 s{SRD_X+3}, 0x20000")
    srd(SRD_W1, 18, D*F*2)
    def chunk_dma(tau):
        slot = (tau % 3) * 8192
        A(f"s_lshl_b32 s{sX}, s{sROT}, 7"); m0(sLB, slot); A(f"s_add_u32 s{sX}, s{sX}, s{sXB}")
        for b in range(4): dma(vx+b, SRD_X, f"s{sX}", 1024*b, f"c{tau}")
        A(f"s_mul_i32 s{sWo}, s{sROT}, {64*3584}"); m0(sLB, slot+4096); A(f"s_add_u32 s{sWo}, s{sWo}, s{sWB}")
        for b in range(4): dma(vw+b, SRD_W1, f"s{sWo}", 1024*b, f"c{tau}")
        if tau < 6:
            A(f"s_add_u32 s{sROT}, s{sROT}, 1"); A(f"s_cmp_eq_u32 s{sROT}, 7"); A(f"s_cselect_b32 s{sROT}, 0, s{sROT}")
    chunk_dma(0)
    srd(SRD_SSM, 12, D*S*2); srd(SRD_W2, 20, D*F*2); srd(SRD_WS, 26, WS_SIZE)
    A(f"s_load_dword s{sTAGC}, s[26:27], s{sCG}"); A(f"s_load_dword s{sTAGH}, s[26:27], s{sHG}")
    A(f"v_bfe_u32 v{t1}, v1, 2, 2")
    A(f"v_and_b32 v{t2}, 1, v{t0}"); A(f"v_lshl_add_u32 v{t1}, v{t2}, 2, v{t1}")
    A(f"v_lshrrev_b32 v{t2}, 1, v{t1}")
    A(f"v_lshrrev_b32 v{t3}, 1, v{t0}"); A(f"v_lshl_add_u32 v{t1}, v{t3}, 4, v{t1}")
    A(f"v_bfe_u32 v{t3}, v1, 1, 1"); A(f"v_lshl_add_u32 v{t2}, v{t3}, 2, v{t2}")
    A(f"v_lshlrev_b32 v{t2}, 4, v{t2}"); A(f"v_lshl_add_u32 v{t1}, v{t1}, 7, v{t2}")
    A(f"v_and_b32 v{t2}, 1, v1"); A(f"v_lshl_add_u32 v{t1}, v{t2}, 3, v{t1}")
    A(f"v_add_u32 v{aW}, s{sLB}, v{t1}")
    for f in range(1, 4): A(f"v_xor_b32 v{aW+f}, {f<<4}, v{aW}")
    vL4 = 20
    A(f"v_lshlrev_b32 v{vL4}, 2, v1"); A(f"v_lshlrev_b32 v{vL16}, 4, v1")
    A(f"s_mul_i32 s{sW2}, s{sW}, {448*896}"); A(f"s_lshl1_add_u32 s{sW2}, s{sC2}, s{sW2}")
    A(f"s_mov_b32 s{sK4}, 4096"); A(f"s_mov_b32 s{sK8}, 8192"); A(f"s_mov_b32 s{sK12}, 12288")
    A.wait_vm("kv"); A("s_barrier")
    stamp("B", vST)
    chunk_dma(1)
    A("s_waitcnt lgkmcnt(0)")
    A(f"s_add_u32 s{sTAGC}, s{sTAGC}, {TAGC}"); A(f"s_add_u32 s{sTAGH}, s{sTAGH}, {TAGC}")
    w2 = {"issued": 0, "read": 0, "slot": {}, "free": [24576, 28672]}
    def w2_dma():
        pi = w2["issued"]; sl = w2["free"].pop(0); w2["slot"][pi] = sl
        m0(sLB, sl); A("s_nop 0")
        for b in range(4): dma([vx, vw2o, vx+2, vw2o+1][b], SRD_W2, f"s{sW2}", 1024*b, f"w{pi}")
        A(f"s_add_u32 s{sW2}, s{sW2}, {32*896}")
        w2["issued"] += 1
    def w2_read(wait=True):
        pi = w2["read"]; sl = w2["slot"][pi]
        if wait: A.wait_vm(f"w{pi}")
        for f in range(4):
            for u in range(2):
                r = 32 + 16*pi + 4*f + 2*u
                A.ds(f"ds_read_b64_tr_b16 v[{r}:{r+1}], v{aW+f} offset:{sl + 1024*u}", f"wr{pi}")
        w2["read"] += 1
        return sl
    covered = set()
    SS = 232
    kv_flag_off = sU[10]
    A(f"s_lshr_b32 s{sT0}, s{sQ}, 3"); A(f"s_lshl_b32 s{sT0}, s{sT0}, 7"); A(f"s_add_u32 s{sT0}, s{sT0}, s{sCG}"); A(f"s_add_u32 s{kv_flag_off}, s{sT0}, 128")
    def kvt_dma():
        A(f"s_lshl1_add_u32 s{sT0}, s{sCH}, s{sWR}"); A(f"s_lshl_b32 s{sT0}, s{sT0}, 11"); A(f"s_add_u32 s{sT0}, s{sT0}, {WS_KVT}")
        A(f"s_mul_i32 s{sT1}, s{sWF}, {CONVSZ}"); A(f"s_lshl_b32 s{sT2}, s{sWR}, 11"); A(f"s_add_u32 s{sT1}, s{sT1}, s{sT2}")
        m0(sT1, CONV0+X_OFF); A("s_nop 0")
        A(f"buffer_load_dwordx4 v{vL16}, s[{SRD_WS}:{SRD_WS+3}], s{sT0} offen sc1 lds")
        A(f"buffer_load_dwordx4 v{vL16}, s[{SRD_WS}:{SRD_WS+3}], s{sT0} offen offset:1024 sc1 lds")
    for tau in range(7):
        A.wait_vm(f"c{tau}")
        last = max(i for i, t in enumerate(A.vm) if t == f"c{tau}")
        landed = [pi for pi in range(w2["read"], w2["issued"]) if max(i for i, t in enumerate(A.vm) if t == f"w{pi}") < last]
        ssm_landed = "ssm" in A.vm and max(i for i, t in enumerate(A.vm) if t == "ssm") < last and "ssmdone" not in covered
        A("s_barrier")
        stamp("B", vST)
        freed = []
        for pi in landed: freed.append(w2_read(wait=False))
        if freed:
            A("s_waitcnt lgkmcnt(0)"); w2["free"] += freed
        for _ in range(cfg.w2_p1.get(tau, 0)):
            if w2["free"]: w2_dma()
        if tau == cfg.ssm_at:
            A(f"s_lshl1_add_u32 s{sT0}, s{sCH}, s{sWR}"); A(f"s_lshl_b32 s{sT0}, s{sT0}, 11")
            A(f"v_add_u32 v{t1}, s{sT0}, v{vL16}"); A(f"v_add_u32 v{t2}, -4, v{t1}")
            A(f"s_lshl_b32 s{sT1}, s{sWR}, 4"); A(f"v_add_u32 v{t3}, s{sT1}, v{vL16}"); A(f"v_cmp_eq_u32 vcc, 0, v{t3}"); A("s_nop 1")
            A(f"v_cndmask_b32 v{t3}, v{t2}, -1, vcc")
            A.vmem(f"buffer_load_dwordx4 v[{SS}:{SS+3}], v{t1}, s[{SRD_SSM}:{SRD_SSM+3}], 0 offen", "ssm")
            A.vmem(f"buffer_load_dwordx4 v[{SS+4}:{SS+7}], v{t1}, s[{SRD_SSM}:{SRD_SSM+3}], 0 offen offset:1024", "ssm")
            A.vmem(f"buffer_load_dword v{SS+8}, v{t3}, s[{SRD_SSM}:{SRD_SSM+3}], 0 offen", "ssm")
            A.vmem(f"buffer_load_dword v{SS+9}, v{t1}, s[{SRD_SSM}:{SRD_SSM+3}], 0 offen offset:1020", "ssm")
        if tau + 2 < 7: chunk_dma(tau+2)
        if ssm_landed:
            covered.add("ssmdone")
            A(f"s_mul_i32 s{sT1}, s{sWF}, {CONVSZ}"); A(f"s_lshl_b32 s{sT2}, s{sWR}, 11"); A(f"s_add_u32 s{sT1}, s{sT1}, s{sT2}"); A(f"s_add_u32 s{sT1}, s{sT1}, {CONV0}")
            A(f"v_add_u32 v{t1}, s{sT1}, v{vL16}")
            for h in range(2):
                src = SS + 4*h; dst = SS + 12 + 4*h
                A(f"v_alignbit_b32 v{dst}, v{src}, v{SS+8+h}, 16")
                for r in range(1, 4): A(f"v_alignbit_b32 v{dst+r}, v{src+r}, v{src+r-1}, 16")
                A.ds(f"ds_write_b128 v{t1}, v[{src}:{src+3}] offset:{E_OFF+1024*h}")
                A.ds(f"ds_write_b128 v{t1}, v[{dst}:{dst+3}] offset:{O_OFF+1024*h}")
        if tau == 5:
            setexec(32)
            A.vmem(f"buffer_load_dword v{t0}, v{vL4}, s[{SRD_WS}:{SRD_WS+3}], s{kv_flag_off} offen sc1", "kvf")
            setexec(64)
        if tau == 6:
            lk = A.newlabel("KVN")
            A.wait_vm("kvf")
            setexec(32); A(f"v_cmp_ne_u32 vcc, s{sTAGC}, v{t0}"); setexec(64)
            A(f"s_mov_b32 s{sPEND}, 1")
            A(f"s_cbranch_vccnz {lk}")
            kvt_dma(); A(f"s_mov_b32 s{sPEND}, 0")
            A.label(lk)
            A.vm += ["kvt", "kvt"]
    assert "ssmdone" in covered
    A("s_barrier")
    stamp("B", vST)
    w2["free"] = [s_ for s_ in w2["free"] if s_ != OUTBOX] + [0, 4096, 8192, 12288, 16384, 20480]
    lk = A.newlabel("KVD")
    A(f"s_cmp_eq_u32 s{sPEND}, 0"); A(f"s_cbranch_scc1 {lk}")
    poll(vL4, f"s{kv_flag_off}", 32, sTAGC, t0); A.vm.pop()
    kvt_dma()
    A.label(lk)
    for _ in range(2): w2_dma()
    A.wait_vm("kvt")
    while w2["read"] < w2["issued"] - 2:
        sl = w2_read(wait=False)
        if sl != OUTBOX: w2["free"].append(sl)
    A("s_waitcnt lgkmcnt(0)")
    A("s_barrier")
    stamp("B", vST)
    while w2["read"] < 14:
        while w2["issued"] < 14 and w2["issued"] - w2["read"] < 3:
            w2_dma()
        sl = w2_read()
        A("s_waitcnt lgkmcnt(8)")
        w2["free"].append(sl)
    stamp("B", vST)
    A(f"s_mul_i32 s{sT0}, s{sW}, 28"); A(f"s_lshl_b32 s{sT1}, s{sFH}, 7"); A(f"s_add_u32 s{sT0}, s{sT0}, s{sT1}"); A(f"s_add_u32 s{sT0}, s{sT0}, s{sHG}"); A(f"s_add_u32 s{sT0}, s{sT0}, 128")
    poll(vL4, f"s{sT0}", 7, sTAGH, t0)
    A("s_waitcnt lgkmcnt(0)")
    stamp("B", vST)
    vH, vOB, HB, G = 2, 3, [4, 8, 12], 16
    A(f"v_lshrrev_b32 v{vOB}, 8, v{vL16}"); A(f"v_lshl_add_u32 v{vOB}, v{vOB}, 4, v{vL16}"); A(f"v_add_u32 v{vOB}, s{sLB}, v{vOB}")
    sHB = sU[11:15]
    for tau in range(4):
        A(f"s_add_u32 s{sT0}, s{sFB}, {tau}"); A(f"s_and_b32 s{sT0}, s{sT0}, 3"); A(f"s_lshr_b32 s{sT1}, s{sR2}, 4"); A(f"s_add_u32 s{sT0}, s{sT0}, s{sT1}")
        A(f"s_lshl2_add_u32 s{sT0}, s{sT0}, s{sW}"); A(f"s_mul_i32 s{sT0}, s{sT0}, {14*1024}"); A(f"s_add_u32 s{sHB[tau]}, s{sT0}, {WS_H}")
    A(f"v_add_u32 v{vH}, s{sHB[0]}, v{vL16}")
    for tau in range(3, 0, -1): A(f"s_sub_u32 s{sHB[tau]}, s{sHB[tau]}, s{sHB[tau-1]}")
    A(f"v_add_u32 v{vL16}, s{sLB}, v{vL16}")
    def h_dma(n):
        tau, pi = divmod(n, 14)
        if pi == 0 and tau > 0: A(f"v_add_u32 v{vH}, s{sHB[tau]}, v{vH}")
        if pi % 4 == 0:
            m0(sLB, pi*1024); A("s_nop 0")
        so = ["0", f"s{sK4}", f"s{sK8}", f"s{sK12}"][pi // 4]
        dma(vH, SRD_WS, so, (pi % 4)*1024, f"h{n}", "sc1")
    def h_read(n):
        A.wait_vm(f"h{n}")
        r = HB[n % 3]
        A.ds(f"ds_read_b128 v[{r}:{r+3}], v{vL16} offset:{(n % 14)*1024}", f"hr{n}")
    L = cfg.look
    for n in range(L): h_dma(n)
    h_read(0); h_read(1)
    vLF = 20
    for n in range(56):
        tau, pi = divmod(n, 14)
        A.wait_lg(f"hr{n}")
        r = HB[n % 3]
        mf = [f"v_mfma_f32_16x16x32_bf16 v[{G+4*f}:{G+4*f+3}], v[{32+16*pi+4*f}:{35+16*pi+4*f}], v[{r}:{r+3}], " + ("0" if pi == 0 else f"v[{G+4*f}:{G+4*f+3}]") for f in range(4)]
        A(mf[0])
        if n + 2 < 56: h_read(n+2)
        A(mf[1]); A(mf[2])
        if n + L < 56: h_dma(n+L)
        A(mf[3])
        if pi == 13:
            A("s_nop 4")
            for f in range(4):
                A.ds(f"ds_write_b128 v{vOB}, v[{G+4*f}:{G+4*f+3}] offset:{POFF[tau]+1088*f}", f"pw{tau}")
            A(f"v_mov_b32 v{r}, {LF_P+4*tau}"); A(f"v_mov_b32 v{r+1}, 1")
            A("s_waitcnt lgkmcnt(0)")
            lds_signal(r, 0, r+1)
            stamp("B", vST)
    stamp_dump(vST, 4)
    A("s_endpgm")

    A.raw(".p2align 3")
    A.label("L_A")
    A.vm = []; A.lg = []
    if cfg.prioA: A(f"s_setprio {cfg.prioA}")
    V = Alloc(2, 256)
    vST = 0; vl = 1
    vt, vt1, vt2, vt3 = V.get("t0"), V.get("t1"), V.get("t2"), V.get("t3")
    vidx, vg, vz, vl16, vr32, vhi = V.get("idx"), V.get("g"), V.get("zero"), V.get("l16"), V.get("r32"), V.get("hi")
    vtagc, vtagh, vone, vlf = V.get("tagc"), V.get("tagh"), V.get("one"), V.get("lf")
    sDD, sKVS, sKVF, sHS0, sHS1, sHS2, sHS3, sHF, sYS, sYF, sYP, sYL = sU[0:12]
    sO = sU[12:16]
    A(f"v_and_b32 v{vidx}, 15, v{vl}"); A(f"v_lshrrev_b32 v{vg}, 4, v{vl}"); A(f"v_mov_b32 v{vz}, 0"); A(f"v_lshlrev_b32 v{vl16}, 4, v{vl}")
    A(f"v_and_b32 v{vr32}, 31, v{vl}"); A(f"v_lshrrev_b32 v{vhi}, 5, v{vl}"); A(f"v_mov_b32 v{vone}, 1"); A(f"v_mov_b32 v{vlf}, {LFL}")
    vtap = V.get("tap", 2)
    A(f"s_lshl4_add_u32 s{sT0}, s{sW}, s{sC2}"); A(f"v_add_lshl_u32 v{vt}, v{vidx}, s{sT0}, 3")
    A(f"s_and_b32 s{sT1}, s{sCH}, 0xfffe"); A(f"s_lshl_b32 s{sT1}, s{sT1}, 1")
    A("s_waitcnt lgkmcnt(0)")
    if stamps:
        A("s_mov_b32 s3, s100"); A(f"s_mov_b32 s24, s{sT3}")
    stamp("A", vST)
    A.vmem(f"global_load_dwordx2 v[{vtap}:{vtap+1}], v{vt}, s[10:11]", "tap")
    A(f"s_load_dword s{sTAGC}, s[26:27], s{sCG}"); A(f"s_load_dword s{sTAGH}, s[26:27], s{sHG}"); A(f"s_load_dword s{sDD}, s[14:15], s{sT1}")
    srd(SRD_X, 4, S*D*2); srd(SRD_OUT, 22, S*D*2); srd(SRD_WS, 26, WS_SIZE)
    A(f"s_mul_i32 s{sT0}, s{sWF}, {CONVSZ}"); A(f"s_add_u32 s{sT0}, s{sT0}, {CONV0}")
    A(f"v_lshl_add_u32 v{vt}, v{vl}, 2, s{sT0}")
    A(f"ds_write_b32 v{vt}, v{vz} offset:{X_OFF+4096}"); A(f"ds_write_b32 v{vt}, v{vz} offset:{X_OFF+4096+256}")
    A(f"v_lshl_add_u32 v{vt1}, v{vl}, 2, v{vlf}")
    setexec(16)
    A(f"ds_write_b32 v{vt}, v{vz} offset:0"); A(f"ds_write_b32 v{vt}, v{vz} offset:{O_OFF-64}"); A(f"ds_write_b32 v{vt1}, v{vz}")
    setexec(64)
    aK = V.get("aK", 4); aKO = V.get("aKO"); aKL = V.get("aKL"); vKS = V.get("vKS")
    A(f"v_lshrrev_b32 v{vt}, 2, v{vidx}")
    A(f"v_bfe_u32 v{vt1}, v{vidx}, 1, 1"); A(f"s_lshl_b32 s{sT1}, s{sW}, 1"); A(f"v_or_b32 v{vt1}, s{sT1}, v{vt1}")
    A(f"v_lshrrev_b32 v{vt2}, 3, v{vidx}"); A(f"v_xor_b32 v{vt1}, v{vt1}, v{vt2}"); A(f"v_lshlrev_b32 v{vt1}, 4, v{vt1}")
    A(f"v_lshl_add_u32 v{vt1}, v{vt}, 7, v{vt1}"); A(f"v_and_b32 v{vt2}, 1, v{vidx}"); A(f"v_lshl_add_u32 v{vt1}, v{vt2}, 3, v{vt1}")
    A(f"v_lshl_add_u32 v{aK}, v{vg}, 15, v{vt1}")
    for u in range(1, 4): A(f"v_xor_b32 v{aK+u}, {u*512 + u*32}, v{aK}")
    A(f"s_add_u32 s{sT0}, s{sLB}, 22528")
    A(f"v_xor_b32 v{vt}, 3, v{vg}"); A(f"v_lshlrev_b32 v{vt}, 5, v{vt}"); A(f"v_lshl_add_u32 v{vt}, v{vidx}, 7, v{vt}"); A(f"v_add_u32 v{aKO}, s{sT0}, v{vt}")
    A(f"v_add_u32 v{aKL}, s{sT0}, v{vl16}")
    A(f"v_lshrrev_b32 v{vt}, 3, v{vl}"); A(f"v_lshlrev_b32 v{vt}, 12, v{vt}"); A(f"v_and_b32 v{vt1}, 7, v{vl}"); A(f"v_lshl_add_u32 v{vKS}, v{vt1}, 4, v{vt}")
    A(f"s_lshl4_add_u32 s{sT0}, s{sW}, s{sC2}"); A(f"s_lshl_b32 s{sT0}, s{sT0}, 12")
    A(f"s_lshl_b32 s{sT1}, s{sR2}, 1"); A(f"s_add_u32 s{sYL}, s{sT0}, s{sT1}"); A(f"s_add_u32 s{sYL}, s{sYL}, {WS_YT}")
    A(f"s_sub_u32 s{sT0}, s{sT0}, s{sT1}"); A(f"s_add_u32 s{sKVS}, s{sT0}, {WS_KVT+3968}")
    A(f"s_lshl_b32 s{sT0}, s{sW}, 7"); A(f"s_lshl2_add_u32 s{sT0}, s{sB64}, s{sT0}"); A(f"s_add_u32 s{sT0}, s{sT0}, s{sCG}"); A(f"s_add_u32 s{sKVF}, s{sT0}, 128")
    aB = V.get("aB", 8); aA = V.get("aA", 4); aQ = V.get("aQ", 2); SEL = V.get("SEL", 4, 4)
    A(f"v_bfe_u32 v{vt}, v{vl}, 1, 3"); A(f"v_xor_b32 v{vt1}, v{vt}, v{vhi}"); A(f"v_lshlrev_b32 v{vt1}, 4, v{vt1}")
    A(f"v_lshl_add_u32 v{vt1}, v{vr32}, 7, v{vt1}")
    A(f"s_lshl1_add_u32 s{sT0}, s{sWR}, s{sWF}"); A(f"s_lshl_b32 s{sT0}, s{sT0}, 15")
    A(f"v_add_u32 v{aB}, s{sT0}, v{vt1}")
    for st in range(1, 4): A(f"v_xor_b32 v{aB+st}, {st<<5}, v{aB}")
    for st in range(4): A(f"v_xor_b32 v{aB+4+st}, 0x8000, v{aB+st}")
    A(f"v_xor_b32 v{vt1}, v{vt}, v{vg}"); A(f"v_lshlrev_b32 v{vt1}, 4, v{vt1}"); A(f"v_lshl_add_u32 v{vt1}, v{vidx}, 7, v{vt1}")
    A(f"s_lshl1_add_u32 s{sT0}, s{sFH}, s{sWF}"); A(f"s_lshl_b32 s{sT0}, s{sT0}, 15"); A(f"s_lshl_b32 s{sT1}, s{sWR}, 11"); A(f"s_add_u32 s{sT0}, s{sT0}, s{sT1}")
    A(f"v_add_u32 v{aQ}, s{sT0}, v{vt1}"); A(f"v_xor_b32 v{aQ+1}, 64, v{aQ}")
    A(f"v_lshrrev_b32 v{vt}, 2, v{vidx}")
    A(f"s_lshl1_add_u32 s{sT0}, s{sWF}, s{sWR}")
    A(f"v_xor_b32 v{vt1}, s{sT0}, v{vt}"); A(f"v_lshlrev_b32 v{vt1}, 6, v{vt1}")
    A(f"v_lshl_add_u32 v{vt}, v{vhi}, 3, v{vt}"); A(f"v_lshl_add_u32 v{vt1}, v{vt}, 8, v{vt1}")
    A(f"v_and_b32 v{vt}, 1, v{vg}"); A(f"v_lshl_add_u32 v{vt1}, v{vt}, 5, v{vt1}")
    A(f"v_and_b32 v{vt}, 3, v{vidx}"); A(f"v_lshl_add_u32 v{vt1}, v{vt}, 3, v{vt1}")
    A(f"v_add_u32 v{aA}, 4096, v{vt1}"); A(f"v_xor_b32 v{aA+1}, 64, v{aA}")
    A(f"v_add_u32 v{aA+2}, 0x10000, v{aA}"); A(f"v_add_u32 v{aA+3}, 0x10000, v{aA+1}")
    A(f"v_xor_b32 v{vt}, v{vg}, v{vidx}"); A(f"v_and_b32 v{vt}, 1, v{vt}"); A(f"v_cmp_eq_u32 vcc, 0, v{vt}"); A(f"v_mov_b32 v{vt1}, 0x3f803f80"); A("s_nop 0")
    for r in range(4): A(f"v_cndmask_b32 v{SEL+r}, 0, v{vt1}, vcc")
    aS, aC = V.get("aS"), V.get("aC")
    A(f"s_lshl1_add_u32 s{sT0}, s{sWR}, s{sWF}"); A(f"s_lshl_b32 s{sT0}, s{sT0}, 7"); A(f"s_add_u32 s{sT0}, s{sT0}, {ST1}")
    A(f"s_lshl1_add_u32 s{sT1}, s{sWF}, s{sWR}"); A(f"s_lshl_b32 s{sT1}, s{sT1}, 7"); A(f"s_add_u32 s{sT1}, s{sT1}, {CSUM}")
    A(f"v_lshl_add_u32 v{aS}, v{vr32}, 2, s{sT0}"); A(f"v_lshl_add_u32 v{aC}, v{vr32}, 2, s{sT1}")
    assert ST1 % 256 == 0 and CSUM % 256 == 0
    vHS = V.get("vHS")
    A(f"v_lshrrev_b32 v{vt}, 4, v{vr32}"); A(f"v_mul_u32_u24 v{vt}, 57344, v{vt}"); A(f"v_lshl_add_u32 v{vt}, v{vhi}, 8, v{vt}"); A(f"v_lshl_add_u32 v{vHS}, v{vidx}, 4, v{vt}")
    sHS = [sHS0, sHS1, sHS2, sHS3]
    for ta in range(2):
        for tb in range(2):
            A(f"s_xor_b32 s{sT0}, s{sWF}, {tb}"); A(f"s_lshl1_add_u32 s{sT0}, s{sWR}, s{sT0}"); A(f"s_lshr_b32 s{sT1}, s{sR1}, 5"); A(f"s_add_u32 s{sT0}, s{sT0}, s{sT1}")
            A(f"s_mul_i32 s{sT0}, s{sT0}, 112")
            A(f"s_xor_b32 s{sT1}, s{sWR}, {ta}"); A(f"s_lshl1_add_u32 s{sT1}, s{sWF}, s{sT1}"); A(f"s_add_u32 s{sT0}, s{sT0}, s{sT1}")
            A(f"s_lshr_b32 s{sT1}, s{sF1}, 5"); A(f"s_add_u32 s{sT0}, s{sT0}, s{sT1}"); A(f"s_lshl_b32 s{sT0}, s{sT0}, 10"); A(f"s_add_u32 s{sHS[2*ta+tb]}, s{sT0}, {WS_H}")
    A(f"s_lshr_b32 s{sT0}, s{sF1}, 6"); A(f"s_add_u32 s{sT0}, s{sT0}, s{sWF}"); A(f"s_lshl_b32 s{sT1}, s{sWR}, 7"); A(f"s_lshl2_add_u32 s{sT0}, s{sT0}, s{sT1}")
    A(f"s_add_u32 s{sT0}, s{sT0}, s{sHG}"); A(f"s_add_u32 s{sHF}, s{sT0}, 128")
    aH = V.get("aH", 4); aX = V.get("aX"); AD = V.get("AD", 4, 4)
    A(f"s_mul_i32 s{sT0}, s{sWF}, {CONVSZ}"); A(f"s_lshl_b32 s{sT1}, s{sWR}, 8"); A(f"s_add_u32 s{sT0}, s{sT0}, s{sT1}"); A(f"s_add_u32 s{sT0}, s{sT0}, {CONV0}")
    A(f"v_and_b32 v{vt}, 1, v{vidx}"); A(f"v_cmp_eq_u32 vcc, 1, v{vt}"); A(f"v_mov_b32 v{vt1}, {O_OFF-28}"); A(f"v_mov_b32 v{vt2}, {E_OFF-30}")
    A(f"v_cndmask_b32 v{vt}, v{vt1}, v{vt2}, vcc")
    A(f"v_lshl_add_u32 v{vt}, v{vidx}, 1, v{vt}"); A(f"v_lshl_add_u32 v{vt}, v{vg}, 4, v{vt}"); A(f"v_add_u32 v{aH}, s{sT0}, v{vt}")
    for i in range(1, 4): A(f"v_add_u32 v{aH+i}, {1024*i}, v{aH}")
    A(f"v_lshlrev_b32 v{vt}, 5, v{vidx}"); A(f"v_lshlrev_b32 v{vt1}, 4, v{vg}"); A(f"v_sub_u32 v{vt}, v{vt1}, v{vt}")
    A(f"s_add_u32 s{sT0}, s{sT0}, {X_OFF+480}"); A(f"v_add_u32 v{aX}, s{sT0}, v{vt}")
    A(f"s_lshl1_add_u32 s{sT0}, s{sCH}, s{sWR}"); A(f"s_lshl_b32 s{sT0}, s{sT0}, 11"); A(f"s_add_u32 s{sYS}, s{sT0}, {WS_YT}")
    A(f"s_sub_u32 s{sT0}, s{sCH}, s{sC2}"); A(f"s_lshl_b32 s{sT1}, s{sWR}, 8"); A(f"s_lshl2_add_u32 s{sT0}, s{sT0}, s{sT1}"); A(f"s_add_u32 s{sT0}, s{sT0}, s{sCG}"); A(f"s_add_u32 s{sYF}, s{sT0}, 768")
    A(f"s_lshr_b32 s{sT0}, s{sR2}, 10"); A(f"s_lshl_b32 s{sT0}, s{sT0}, 8"); A(f"s_add_u32 s{sT0}, s{sT0}, s{sCG}"); A(f"s_add_u32 s{sYP}, s{sT0}, 768")
    for tau in range(4):
        A(f"s_add_u32 s{sT0}, s{sFB}, {tau}"); A(f"s_and_b32 s{sT0}, s{sT0}, 3"); A(f"s_lshl2_add_u32 s{sT0}, s{sT0}, s{sW}"); A(f"s_lshl2_add_u32 s{sT0}, s{sT0}, s{sR2}")
        A(f"s_mul_i32 s{sT0}, s{sT0}, 896"); A(f"s_lshl1_add_u32 s{sO[tau]}, s{sC2}, s{sT0}")
    A("s_waitcnt lgkmcnt(0)")
    A(f"s_add_u32 s{sTAGC}, s{sTAGC}, {TAGC}"); A(f"s_add_u32 s{sTAGH}, s{sTAGH}, {TAGC}")
    A(f"v_mov_b32 v{vtagc}, s{sTAGC}"); A(f"v_mov_b32 v{vtagh}, s{sTAGH}")
    A(f"s_lshl_b32 s{sT0}, s{sWF}, 4"); A(f"s_lshr_b32 s{sT0}, s{sDD}, s{sT0}"); A(f"s_and_b32 s{sT0}, s{sT0}, 0xffff")
    A(f"s_cmp_eq_u32 s{sWR}, 0"); A(f"s_cselect_b32 s{sT0}, s{sT0}, 0")
    A(f"v_xor_b32 v{vt}, 15, v{vidx}")
    A(f"v_and_b32 v{vt1}, 1, v{vt}"); A(f"v_lshlrev_b32 v{vt1}, 4, v{vt1}"); A(f"v_lshlrev_b32 v{vt1}, v{vt1}, s{sT0}")
    A(f"v_lshrrev_b32 v{vt}, 1, v{vt}"); A(f"v_lshlrev_b32 v{vt2}, 2, v{vg}"); A(f"v_sub_u32 v{vt}, v{vt}, v{vt2}")
    for r in range(4):
        A(f"v_cmp_eq_u32 vcc, {r}, v{vt}"); A("s_nop 1"); A(f"v_cndmask_b32 v{AD+r}, 0, v{vt1}, vcc")
    A.wait_vm("tap")
    A(f"v_alignbit_b32 v{vtap}, v{vtap}, v{vtap}, 16"); A(f"v_alignbit_b32 v{vtap+1}, v{vtap+1}, v{vtap+1}, 16")
    stamp("A", vST)
    A("s_barrier")
    stamp("A", vST)
    kd = V.get("kd", 10, 2); vd = V.get("vd", 8, 2); ks = V.get("ks", 9); ov = V.get("ov", 16, 4); pk = V.get("pk", 8, 4)
    A.ds(f"ds_read_b64_tr_b16 v[{kd}:{kd+1}], v{aK+1} offset:{16384+4096}")
    for u in range(4): A.ds(f"ds_read_b64_tr_b16 v[{kd+2+2*u}:{kd+3+2*u}], v{aK+u} offset:16384")
    for u in range(4): A.ds(f"ds_read_b64_tr_b16 v[{vd+2*u}:{vd+2*u+1}], v{aK+u} offset:{16384+2048}")
    A("s_waitcnt lgkmcnt(4)")
    for e in range(9): A(f"v_alignbit_b32 v{ks+e}, v{kd+e+1}, v{kd+e}, 16")
    for e in range(8):
        A(f"v_dot2_f32_bf16 v{ov+2*e+1}, v{kd+e+2}, v{vtap}, 0"); A(f"v_dot2_f32_bf16 v{ov+2*e}, v{ks+e+1}, v{vtap}, 0")
    for e in range(8):
        A(f"v_dot2_f32_bf16 v{ov+2*e+1}, v{kd+e+1}, v{vtap+1}, v{ov+2*e+1}"); A(f"v_dot2_f32_bf16 v{ov+2*e}, v{ks+e}, v{vtap+1}, v{ov+2*e}")
    A("s_waitcnt lgkmcnt(0)")
    for e in range(8):
        A(f"v_lshlrev_b32 v{ks+e}, 16, v{vd+e}"); A(f"v_and_b32 v{vd+e}, 0xffff0000, v{vd+e}")
    for e in range(8):
        A(f"v_mul_f32 v{ov+2*e}, v{ov+2*e}, v{ks+e}"); A(f"v_mul_f32 v{ov+2*e+1}, v{ov+2*e+1}, v{vd+e}")
    for u in range(8): A(f"v_cvt_pk_bf16_f32 v{pk+u}, v{ov+15-2*u}, v{ov+14-2*u}")
    A.ds(f"ds_write_b128 v{aKO}, v[{pk}:{pk+3}]"); A.ds(f"ds_write_b128 v{aKO}, v[{pk+4}:{pk+7}] offset:16")
    A(f"s_add_u32 s{sT1}, s{sKVS}, {8*4096}")
    A("s_waitcnt lgkmcnt(0)")
    A.ds(f"ds_read_b128 v[{ov}:{ov+3}], v{aKL}"); A.ds(f"ds_read_b128 v[{ov+4}:{ov+7}], v{aKL} offset:1024")
    A("s_waitcnt lgkmcnt(0)")
    A.vmem(f"buffer_store_dwordx4 v[{ov}:{ov+3}], v{vKS}, s[{SRD_WS}:{SRD_WS+3}], s{sKVS} offen sc1", "kvst")
    A.vmem(f"buffer_store_dwordx4 v[{ov+4}:{ov+7}], v{vKS}, s[{SRD_WS}:{SRD_WS+3}], s{sT1} offen sc1", "kvst")
    V.free("kd", "vd", "ks", "pk", "tap", "aK", "aKO", "aKL")
    stamp("A", vST)
    acc = V.get("acc", 64, 4)
    fr = [V.get("fr0", 16, 4), V.get("fr1", 16, 4)]
    fq = [V.get("fq0", 4, 4), V.get("fq1", 4, 4)]
    CSa, RSa, SQa = V.get("CSa", 4, 4), V.get("RSa", 4, 4), V.get("SQa", 4, 4)
    def reads(tau, st):
        f = fr[st % 2]; so = (tau % 3) * 8192
        out = []
        for t in range(2):
            out.append(f"ds_read_b128 v[{f+8+4*t}:{f+11+4*t}], v{aB+4*t+st} offset:{so}")
            for u in range(2):
                out.append(f"ds_read_b64_tr_b16 v[{f+4*t+2*u}:{f+4*t+2*u+1}], v{aA+2*(st//2)+t} offset:{so+32768*(st%2)+1024*u}")
        if st % 2 == 0:
            out.append(f"ds_read_b128 v[{fq[st//2]}:{fq[st//2]+3}], v{aQ+st//2} offset:{so}")
        return out
    def mfmas(tau, st):
        f = fr[st % 2]; first = (tau == 0 and st == 0)
        out = []
        for ta in range(2):
            for tb in range(2):
                d = acc + 16*(2*ta+tb)
                out.append(f"v_mfma_f32_32x32x16_bf16 v[{d}:{d+15}], v[{f+4*ta}:{f+4*ta+3}], v[{f+8+4*tb}:{f+11+4*tb}], " + ("0" if first else f"v[{d}:{d+15}]"))
        out.append(f"v_mfma_f32_16x16x32_bf16 v[{CSa}:{CSa+3}], v[{SEL}:{SEL+3}], v[{f}:{f+3}], " + ("0" if first else f"v[{CSa}:{CSa+3}]"))
        out.append(f"v_mfma_f32_16x16x32_bf16 v[{RSa}:{RSa+3}], v[{SEL}:{SEL+3}], v[{f+8}:{f+11}], " + ("0" if first else f"v[{RSa}:{RSa+3}]"))
        if st % 2 == 0:
            q = fq[st//2]
            out.append(f"v_mfma_f32_16x16x32_bf16 v[{SQa}:{SQa+3}], v[{q}:{q+3}], v[{q}:{q+3}], " + ("0" if first else f"v[{SQa}:{SQa+3}]"))
        return out
    def weave(mf, rd, tag, per=2):
        i = 0
        for m in mf:
            A(m)
            for r in rd[i:i+per]: A.ds(r, tag)
            i += per
        for r in rd[i:]: A.ds(r, tag)
    for tau in range(7):
        A.c(f"chunk {tau}")
        if tau == 1: A.wait_vm("kvst", " lgkmcnt(0)")
        else: A("s_waitcnt lgkmcnt(0)")
        if tau == 1: flag_store(f"s{sKVF}", vtagc, vz)
        A("s_barrier")
        stamp("A", vST)
        if tau == 0:
            for r in reads(0, 0): A.ds(r, "r0_0")
        else:
            for r in reads(tau, 0)[:3]: A.ds(r, f"r{tau}_0")
            weave(mfmas(tau-1, 3), reads(tau, 0)[3:], f"r{tau}_0")
        for st in range(3):
            A("s_waitcnt lgkmcnt(0)")
            weave(mfmas(tau, st), reads(tau, st+1), f"r{tau}_{st+1}")
    A("s_waitcnt lgkmcnt(0)")
    mf = mfmas(6, 3)
    for m in mf[4:] + mf[:4]: A(m)
    V.free("ov")
    f0, f1 = fr
    A(f"v_and_b32 v{vt}, 1, v{vg}"); A(f"v_cmp_eq_u32 vcc, 1, v{vt}")
    A(f"v_lshrrev_b32 v{vt1}, 2, v{vidx}"); A(f"v_cmp_eq_u32 s[{sT0}:{sT1}], v{vt1}, v{vg}")
    A(f"v_cndmask_b32 v{f0+1}, v{CSa}, v{CSa+1}, vcc"); A(f"v_cndmask_b32 v{f0+9}, v{RSa}, v{RSa+1}, vcc")
    A.ds(f"ds_write_b32 v{aC}, v{f0+1}"); A.ds(f"ds_write_b32 v{aS}, v{f0+9}")
    A(f"v_and_b32 v{vt}, 1, v{vidx}"); A(f"v_cmp_eq_u32 vcc, 1, v{vt}"); A(f"v_and_b32 v{vt}, 2, v{vidx}"); A(f"s_lshl_b32 s{sT2}, s{sW}, 6")
    A(f"v_cndmask_b32 v{vt1}, v{SQa}, v{SQa+1}, vcc"); A(f"v_cndmask_b32 v{vt2}, v{SQa+2}, v{SQa+3}, vcc")
    A(f"v_cmp_eq_u32 vcc, 2, v{vt}"); A(f"s_add_u32 s{sT2}, s{sT2}, {ST2}"); A(f"v_lshl_add_u32 v{vt3}, v{vidx}, 2, s{sT2}")
    A(f"v_cndmask_b32 v{vt1}, v{vt1}, v{vt2}, vcc")
    A(f"s_mov_b64 exec, s[{sT0}:{sT1}]"); A.ds(f"ds_write_b32 v{vt3}, v{vt1}"); A("s_mov_b64 exec, -1")
    A(f"v_xor_b32 v{aC}, 128, v{aC}"); A(f"v_xor_b32 v{aS}, 128, v{aS}")
    A(f"v_cmp_eq_u32 vcc, 0, v{vhi}")
    A("s_waitcnt lgkmcnt(0)"); A("s_barrier")
    stamp("A", vST)
    A.ds(f"ds_read_b32 v{f0+5}, v{aC}"); A.ds(f"ds_read_b32 v{f0+13}, v{aS}")
    for r in (2, 3, 6, 7, 10, 11, 14, 15): A(f"v_mov_b32 v{f0+r}, 0")
    A(f"s_mov_b32 s{sT2}, 0xbb124925")
    for t in range(2):
        if t == 1: A("s_waitcnt lgkmcnt(0)")
        c = f0 + 4*t + 1; m = f0 + 9 + 4*t
        A(f"v_cndmask_b32 v{c}, 0, v{c}, vcc"); A(f"v_mul_f32 v{m}, s{sT2}, v{m}")
        A(f"v_and_b32 v{vt}, 0xffff0000, v{c}"); A(f"v_sub_f32 v{c}, v{c}, v{vt}")
        A(f"v_and_b32 v{vt1}, 0xffff0000, v{c}"); A(f"v_sub_f32 v{c}, v{c}, v{vt1}")
        A(f"v_lshrrev_b32 v{vt}, 16, v{vt}"); A(f"v_or_b32 v{c-1}, v{vt}, v{vt1}"); A(f"v_lshrrev_b32 v{c}, 16, v{c}")
        A(f"v_cvt_pk_bf16_f32 v{m-1}, v{m}, v{m}"); A(f"v_cvt_pk_bf16_f32 v{m}, v{m}, v{m}")
    A("s_nop 1")
    for ta in range(2):
        for tb in range(2):
            d = acc + 16*(2*ta+tb)
            A(f"v_mfma_f32_32x32x16_bf16 v[{d}:{d+15}], v[{f0+4*ta}:{f0+4*ta+3}], v[{f0+8+4*tb}:{f0+11+4*tb}], v[{d}:{d+15}]")
    hp = V.get("hp", 32, 4, at=224)
    A("s_nop 8")
    for t in range(4):
        d = acc + 16*t; p = hp + 8*t
        for u in range(8): A(f"v_cvt_pk_bf16_f32 v{p+u}, v{d+2*u}, v{d+2*u+1}")
        for u in range(8): A(f"v_pk_max_i16 v{p+u}, v{p+u}, 0")
        A.vmem(f"buffer_store_dwordx4 v[{p}:{p+3}], v{vHS}, s[{SRD_WS}:{SRD_WS+3}], s{sHS[t]} offen sc1", "hst")
        A.vmem(f"buffer_store_dwordx4 v[{p+4}:{p+7}], v{vHS}, s[{SRD_WS}:{SRD_WS+3}], s{sHS[t]} offen offset:512 sc1", "hst")
    V.free("acc", "fr0", "fr1", "fq0", "fq1", "CSa", "RSa", "SQa", "aB", "aA", "aQ", "SEL", "aS", "aC", "vHS", "r32", "hi")
    stamp("A", vST)
    Y = V.get("Y", 32, 4)
    OA = [V.get("A0", 32, 4), V.get("A1", 32, 4)]; OB = [V.get("B0", 32, 4), V.get("B1", 32, 4)]
    def conv_reads(u):
        out = []
        a, b = OA[u % 2], OB[u % 2]
        for j in range(8): out.append(f"ds_read_b128 v[{b+4*j}:{b+4*j+3}], v{aX} offset:{64*u+512*(7-j)}")
        for j in range(8):
            o = (64*u + 512*(j & 1)) // 4
            out.append(f"ds_read2_b32 v[{a+4*j}:{a+4*j+1}], v{aH+(j>>1)} offset0:{o} offset1:{o+1}")
            out.append(f"ds_read2_b32 v[{a+4*j+2}:{a+4*j+3}], v{aH+(j>>1)} offset0:{o+2} offset1:{o+3}")
        return out
    A("s_barrier")
    stamp("A", vST)
    for i, r in enumerate(conv_reads(0)): A.ds(r, f"c0_{i}")
    for u in range(4):
        A.c(f"conv class {u}")
        a, b = OA[u % 2], OB[u % 2]
        mf = []
        if u == 0:
            A("s_waitcnt lgkmcnt(15)")
            for c in range(8): A(f"v_mfma_f32_16x16x32_bf16 v[{Y+4*c}:{Y+4*c+3}], v[{AD}:{AD+3}], v[{b+4*c}:{b+4*c+3}], 0")
        A("s_waitcnt lgkmcnt(0)")
        for j in range(8):
            for c in range(j, 8):
                mf.append(f"v_mfma_f32_16x16x32_bf16 v[{Y+4*c}:{Y+4*c+3}], v[{a+4*j}:{a+4*j+3}], v[{b+4*(c-j)}:{b+4*(c-j)+3}], v[{Y+4*c}:{Y+4*c+3}]")
        side = conv_reads(u+1) if u < 3 else []
        for i, m in enumerate(mf):
            A(m)
            if i < len(side): A.ds(side[i])
        if u == cfg.hflag_after:
            A.wait_vm("hst"); flag_store(f"s{sHF}", vtagh, vz)
    V.free("hp")
    stamp("A", vST)
    A(f"s_add_u32 s{sT0}, s{sLB}, {OUTBOX}"); A(f"v_add_u32 v{vt}, s{sT0}, v{vl16}"); A(f"v_xor_b32 v{vt1}, 0x8000, v{vt}")
    A(f"s_xor_b32 s{sT0}, s{sT0}, 0x8000"); A(f"v_lshlrev_b32 v{vt2}, 5, v{vidx}"); A(f"v_lshl_add_u32 v{vt2}, v{vg}, 3, v{vt2}"); A(f"v_add_u32 v{vt2}, s{sT0}, v{vt2}")
    A(f"s_lshl2_add_u32 s{sT1}, s{sWF}, {LF_PAIR}"); A(f"v_mov_b32 v{vt3}, s{sT1}")
    la, lb = A.newlabel("RED"), A.newlabel("RED")
    R = OA[0]; Yf = OB[0]
    A(f"s_cmp_eq_u32 s{sWR}, 0"); A(f"s_cbranch_scc1 {la}")
    for c in range(4): A(f"ds_write_b128 v{vt}, v[{Y+4*c}:{Y+4*c+3}] offset:{1024*c}")
    for r in range(16): A(f"v_mov_b32 v{Yf+r}, v{Y+16+r}")
    A(f"s_branch {lb}")
    A.label(la)
    for c in range(4): A(f"ds_write_b128 v{vt}, v[{Y+16+4*c}:{Y+16+4*c+3}] offset:{1024*c}")
    for r in range(16): A(f"v_mov_b32 v{Yf+r}, v{Y+r}")
    A.label(lb)
    A("s_waitcnt lgkmcnt(0)")
    lds_signal(vt3, 0, vone)
    lds_wait(vt3, 0, 2, R, sleep=0)
    for c in range(4): A.ds(f"ds_read_b128 v[{R+4*c}:{R+4*c+3}], v{vt1} offset:{1024*c}")
    A("s_waitcnt lgkmcnt(0)")
    for r in range(16): A(f"v_add_f32 v{Yf+r}, v{Yf+r}, v{R+r}")
    for r in range(8): A(f"v_cvt_pk_bf16_f32 v{R+r}, v{Yf+2*r}, v{Yf+2*r+1}")
    for c in range(4): A.ds(f"ds_write_b64 v{vt2}, v[{R+2*c}:{R+2*c+1}] offset:{512*c}")
    A("s_waitcnt lgkmcnt(0)")
    A.ds(f"ds_read_b128 v[{R+8}:{R+11}], v{vt1}"); A.ds(f"ds_read_b128 v[{R+12}:{R+15}], v{vt1} offset:1024")
    A("s_waitcnt lgkmcnt(0)")
    A.vmem(f"buffer_store_dwordx4 v[{R+8}:{R+11}], v{vl16}, s[{SRD_WS}:{SRD_WS+3}], s{sYS} offen sc1", "yst")
    A.vmem(f"buffer_store_dwordx4 v[{R+12}:{R+15}], v{vl16}, s[{SRD_WS}:{SRD_WS+3}], s{sYS} offen offset:1024 sc1", "yst")
    V.free("Y", "A1", "B0", "B1", "aH", "aX", "AD")
    stamp("A", vST)
    X = V.get("X", 8, 2); U = V.get("U", 16, 4); Wy = V.get("Wy", 16, 4); MM = V.get("M", 4); RR = V.get("R", 4); vXO = V.get("vXO"); aP = V.get("aP", 2); aY = V.get("aY", 4)
    A(f"v_mul_u32_u24 v{vt}, 896, v{vg}"); A(f"v_lshl_add_u32 v{vXO}, v{vidx}, 3, v{vt}")
    for tau in range(4): A.vmem(f"buffer_load_dwordx2 v[{X+2*tau}:{X+2*tau+1}], v{vXO}, s[{SRD_X}:{SRD_X+3}], s{sO[tau]} offen", "xl")
    A(f"v_add_u32 v{vt}, s{sFB}, v{vidx}"); A(f"v_and_b32 v{vt}, 3, v{vt}"); A(f"v_lshl_add_u32 v{vt}, v{vt}, 4, v{vg}")
    A(f"s_lshl_b32 s{sT0}, s{sW}, 4"); A(f"s_add_u32 s{sT1}, s{sT0}, {ST2}"); A(f"s_lshl_b32 s{sT2}, s{sFH}, 8"); A(f"s_add_u32 s{sT0}, s{sT0}, s{sT2}"); A(f"s_add_u32 s{sT0}, s{sT0}, {ST1}")
    A(f"v_lshl_add_u32 v{vt1}, v{vt}, 2, s{sT0}"); A(f"v_lshl_add_u32 v{vt2}, v{vt}, 2, s{sT1}")
    A.ds(f"ds_read_b32 v{vt1}, v{vt1}"); A.ds(f"ds_read_b32 v{vt2}, v{vt2}")
    A(f"v_bfe_u32 v{vt}, v{vidx}, 1, 2"); A(f"v_lshrrev_b32 v{vt3}, 3, v{vidx}"); A(f"v_lshl_add_u32 v{vt}, v{vt}, 1, v{vt3}")
    A(f"v_and_b32 v{vt3}, 1, v{vidx}"); A(f"v_lshl_add_u32 v{vt}, v{vt}, 1, v{vt3}"); A(f"v_mul_u32_u24 v{vt}, 272, v{vt}")
    A(f"v_lshl_add_u32 v{vt}, v{vg}, 4, v{vt}"); A(f"s_lshl_b32 s{sT0}, s{sW}, 6"); A(f"v_add_u32 v{aP}, s{sT0}, v{vt}"); A(f"v_add_u32 v{aP+1}, 0x10000, v{aP}")
    A(f"s_mov_b32 s{sT0}, 0x3b124925")
    A("s_waitcnt lgkmcnt(0)")
    A(f"v_mul_f32 v{vt1}, s{sT0}, v{vt1}"); A(f"v_mul_f32 v{vt2}, s{sT0}, v{vt2}")
    A(f"v_fma_f32 v{vt2}, -v{vt1}, v{vt1}, v{vt2}"); A(f"v_max_f32 v{vt2}, 0, v{vt2}")
    def rbf(r):
        A(f"v_cvt_pk_bf16_f32 v{r}, v{r}, v{r}"); A(f"v_and_b32 v{r}, 0xffff0000, v{r}")
    rbf(vt1); rbf(vt2)
    A(f"v_add_f32 v{vt2}, 0x3727c5ac, v{vt2}"); rbf(vt2)
    A(f"v_sqrt_f32 v{vt2}, v{vt2}"); A("s_nop 0"); rbf(vt2)
    A(f"v_rcp_f32 v{vt2}, v{vt2}"); A("s_nop 1")
    for tau in range(4):
        A(f"v_mov_b32_dpp v{MM+tau}, v{vt1} quad_perm:[{tau},{tau},{tau},{tau}] row_mask:0xf bank_mask:0xf")
        A(f"v_mov_b32_dpp v{RR+tau}, v{vt2} quad_perm:[{tau},{tau},{tau},{tau}] row_mask:0xf bank_mask:0xf")
    A.wait_vm("yst"); flag_store(f"s{sYF}", vtagc, vz)
    A(f"v_and_b32 v{vt}, 7, v{vidx}"); A(f"v_lshlrev_b32 v{vt1}, 9, v{vidx}"); A(f"v_lshl_add_u32 v{vt1}, v{vg}, 1, v{vt1}")
    A(f"s_lshl_b32 s{sT0}, s{sWR}, 3"); A(f"s_add_u32 s{sT0}, s{sT0}, {CONV0}"); A(f"v_add_u32 v{vt1}, s{sT0}, v{vt1}")
    for tau in range(4):
        A(f"s_add_u32 s{sT0}, s{sFB}, {tau}"); A(f"s_and_b32 s{sT0}, s{sT0}, 3"); A(f"s_lshl1_add_u32 s{sT0}, s{sT0}, s{sWF}")
        A(f"v_xor_b32 v{vt2}, s{sT0}, v{vt}"); A(f"v_lshl_add_u32 v{aY+tau}, v{vt2}, 4, v{vt1}")
    for r in range(16): A(f"v_mov_b32 v{Wy+r}, 0")
    A(f"s_lshl_b32 s{sT0}, s{sWR}, 2"); A(f"v_lshrrev_b32 v{vt}, 5, v{vl}"); A(f"v_or_b32 v{vt}, s{sT0}, v{vt}"); A(f"v_lshlrev_b32 v{vt}, 4, v{vt}")
    A(f"v_xor_b32 v{vt}, v{vt}, v{vKS}"); A(f"v_xor_b32 v{vt1}, 32, v{vt}"); A(f"v_add_u32 v{vt1}, {8*4096-1024}, v{vt1}")
    A.wait_vm("xl")
    for tau in range(4):
        for e in range(2):
            A(f"v_lshlrev_b32 v{U+4*tau+2*e}, 16, v{X+2*tau+e}"); A(f"v_and_b32 v{U+4*tau+2*e+1}, 0xffff0000, v{X+2*tau+e}")
    T = R
    for tau in range(4):
        for e in range(4):
            A(f"v_sub_f32 v{T+4*tau+e}, v{U+4*tau+e}, v{MM+tau}"); A(f"v_mul_f32 v{T+4*tau+e}, v{T+4*tau+e}, v{RR+tau}")
    A(f"v_lshlrev_b32 v{vt2}, 2, v{vl}")
    stamp("A", vST)
    poll(vt2, f"s{sYP}", 64, sTAGC, vt3)
    A(f"s_lshl_b32 s{sT0}, s{sW}, 11"); m0(sT0, CONV0); A("s_nop 0")
    dma(vt, SRD_WS, f"s{sYL}", 0, "yt", "sc1"); dma(vt1, SRD_WS, f"s{sYL}", 1024, "yt", "sc1")
    A.wait_vm("yt")
    lds_signal(vlf, LF_Y-LFL, vone)
    lds_wait(vlf, LF_Y-LFL, 4, vt3)
    stamp("A", vST)
    for tau in range(4):
        for e in range(4): A.ds(f"ds_read_u16_d16_hi v{Wy+4*tau+e}, v{aY+tau} offset:{128*e}")
    A("s_waitcnt lgkmcnt(0)")
    for r in range(16): A(f"v_fma_f32 v{U+r}, v{T+r}, v{Wy+r}, v{U+r}")
    Pp = Wy
    for tau in range(4):
        lds_wait(vlf, LF_P-LFL+4*tau, 4, vt3, sleep=(1 if tau < 3 else 0))
        for sw in range(4): A.ds(f"ds_read_b128 v[{Pp+4*sw}:{Pp+4*sw+3}], v{aP+sw//2} offset:{(sw%2)*32768+POFF[tau]}")
        A("s_waitcnt lgkmcnt(2)")
        for e in range(4): A(f"v_add_f32 v{Pp+e}, v{Pp+e}, v{Pp+4+e}")
        A("s_waitcnt lgkmcnt(0)")
        for e in range(4): A(f"v_add_f32 v{Pp+8+e}, v{Pp+8+e}, v{Pp+12+e}")
        for e in range(4): A(f"v_add_f32 v{Pp+e}, v{Pp+e}, v{Pp+8+e}")
        for e in range(4): A(f"v_fma_f32 v{Pp+e}, v{Pp+e}, v{RR+tau}, v{U+4*tau+e}")
        A(f"v_cvt_pk_bf16_f32 v{X+2*tau}, v{Pp}, v{Pp+1}"); A(f"v_cvt_pk_bf16_f32 v{X+2*tau+1}, v{Pp+2}, v{Pp+3}")
        A.vmem(f"buffer_store_dwordx2 v[{X+2*tau}:{X+2*tau+1}], v{vXO}, s[{SRD_OUT}:{SRD_OUT+3}], s{sO[tau]} offen {cfg.out_sc}".rstrip(), "out")
        stamp("A", vST)
    le, le2 = A.newlabel("EP"), A.newlabel("EP")
    A(f"s_cmp_lg_u32 s{sW}, 0"); A(f"s_cbranch_scc1 {le2}")
    A(f"s_cmp_lg_u32 s{sQ}, 0"); A(f"s_cbranch_scc1 {le}")
    flag_store(f"s{sCG}", vtagc, vz)
    A.label(le)
    A(f"s_cmp_lg_u32 s{sF1}, 0"); A(f"s_cbranch_scc1 {le2}")
    flag_store(f"s{sHG}", vtagh, vz)
    A.label(le2)
    stamp_dump(vST, vt)
    A("s_endpgm")

    A.label("L_helper")
    A(f"s_sub_u32 s{sT1}, s{sT1}, 28")
    A("v_lshlrev_b32 v2, 7, v1")
    lh = A.newlabel("HC")
    nl = CODEPAD // 128 // 4
    A(f"s_cmp_lg_u32 s{sT3}, 7"); A(f"s_cbranch_scc1 {lh}")
    A(f"s_mul_i32 s{sT0}, s{sT1}, {nl*128}"); A(f"v_add_u32 v3, s{sT0}, v2"); setexec(nl)
    A(f"global_load_dword v4, v3, s[{sU[0]}:{sU[1]}]"); setexec(64)
    A.label(lh)
    A("s_waitcnt lgkmcnt(0)")
    srd(SRD_SSM, 12, D*S*2); srd(SRD_W2, 20, D*F*2)
    if cfg.helper_delay:
        for _ in range(cfg.helper_delay): A("s_sleep 16")
    A(f"s_mul_i32 s{sT0}, s{sT1}, 401408"); A(f"s_lshl3_add_u32 s{sT2}, s{sT3}, s{sXCD}"); A(f"s_mul_i32 s{sT2}, s{sT2}, {49*128}"); A(f"s_add_u32 s{sT2}, s{sT2}, s{sT0}")
    setexec(49)
    A(f"buffer_load_dword v5, v2, s[{SRD_W2}:{SRD_W2+3}], s{sT2} offen"); setexec(64)
    A(f"s_lshl3_add_u32 s{sT2}, s{sT3}, s{sXCD}"); A(f"s_lshl2_add_u32 s{sT2}, s{sT2}, s{sT1}"); A(f"s_lshl_b32 s{sT2}, s{sT2}, 13")
    A(f"buffer_load_dword v6, v2, s[{SRD_SSM}:{SRD_SSM+3}], s{sT2} offen")
    if cfg.helper_w2_stage2:
        A("s_waitcnt vmcnt(0)"); A("s_barrier")
        A(f"s_mul_i32 s{sT2}, s{sT3}, {56*128}"); A(f"s_add_u32 s{sT0}, s{sT0}, s{sT2}")
        setexec(56)
        for i in range(7):
            A(f"buffer_load_dword v{7+i}, v2, s[{SRD_W2}:{SRD_W2+3}], s{sT0} offen"); A(f"s_add_u32 s{sT0}, s{sT0}, {448*128}")
            if i < 6: A("s_barrier")
    A.label("L_end")
    A("s_endpgm")
    A.raw(f".fill ({CODEPAD+256} - (. - {KNAME}))/4, 4, 0xbf810000")
    A.raw('.section .rodata,"a"'); A.raw(".p2align 6"); A.raw(f".amdhsa_kernel {KNAME}")
    for l in ["next_free_vgpr 256", "next_free_sgpr 102", "accum_offset 256", "group_segment_fixed_size 0", "kernarg_size 96",
              "user_sgpr_count 2", "user_sgpr_kernarg_segment_ptr 1", "system_sgpr_workgroup_id_x 1", "float_denorm_mode_32 3"]:
        A.raw("  .amdhsa_" + l)
    A.raw(".end_amdhsa_kernel")
    return A.text(), nst

if __name__ == "__main__":
    t, n = gen(Cfg()); open("k2.s", "w").write(t)
    t, n = gen(Cfg(stamps=True)); open("k2_st.s", "w").write(t); print("stamps", n)
```
